```python
import torch

def _softmax(x, axis=-1):
    return torch.softmax(x, dim=axis)
def _gelu(x):
    return torch.nn.functional.gelu(x, approximate="tanh")
def _silu(x):
    return torch.nn.functional.silu(x)
def _sigmoid(x):
    return torch.sigmoid(x)
def _layernorm(x, axis=-1, eps=1e-5):
    m = x.mean(dim=axis, keepdim=True)
    v = x.var(dim=axis, keepdim=True, unbiased=False)
    return (x - m) / torch.sqrt(v + eps)
def _scatter_add(tgt, idx, src, axis=0):
    return tgt.clone().index_add_(axis, idx, src)
def _segment_sum(src, seg, n):
    out = torch.zeros((n,) + src.shape[1:], dtype=src.dtype)
    return out.index_add_(0, seg, src)
def _pad(x, pw):
    flat = tuple(v for pair in reversed(pw) for v in pair)
    return torch.nn.functional.pad(x, flat)

kernel_name = 'interleave_layers__spectral_fnet__dense_activation_relu__prompt'

def setup_inputs():

    _w = (lambda a: (lambda t: t.to(torch.bfloat16) if t.is_floating_point() else t)(torch.as_tensor(a)))
    def _A_setup():
        B, S, D = 1, 2048, 640
        ns = torch.arange(S)[:, None] * torch.arange(S)[None, :]
        nd = torch.arange(D)[:, None] * torch.arange(D)[None, :]
        Ws_re = torch.cos(-2.0 * torch.pi * ns / S).to(float)
        Ws_im = torch.sin(-2.0 * torch.pi * ns / S).to(float)
        Wd_re = torch.cos(-2.0 * torch.pi * nd / D).to(float)
        Wd_im = torch.sin(-2.0 * torch.pi * nd / D).to(float)
        return {
            "x": _w((lambda *s: torch.randn(*s, dtype=torch.bfloat16) * 0.05)(B, S, D)),
            "dft_seq_re": _w(Ws_re),
            "dft_seq_im": _w(Ws_im),
            "dft_hid_re": _w(Wd_re),
            "dft_hid_im": _w(Wd_im),
        }
    _A_in = _A_setup()

    def _B_setup():
        B, S, D, Dff = 1, 2048, 640, 1728
        return {
            "x": _w((lambda *s: torch.randn(*s, dtype=torch.bfloat16) * 0.05)(B, S, D)),
            "w1": _w((lambda *s: torch.randn(*s, dtype=torch.bfloat16) * 1.6)(D, Dff)),
            "w2": _w((lambda *s: torch.randn(*s, dtype=torch.bfloat16) * 1.6)(Dff, D)),
        }
    _B_in = _B_setup()

    return {
        "A_x": _A_in["x"],
        "A_dft_seq_re": _A_in["dft_seq_re"],
        "A_dft_seq_im": _A_in["dft_seq_im"],
        "A_dft_hid_re": _A_in["dft_hid_re"],
        "A_dft_hid_im": _A_in["dft_hid_im"],
        "B_x": _B_in["x"],
        "B_w1": _B_in["w1"],
        "B_w2": _B_in["w2"],
    }

def reference(A_x, A_dft_seq_re, A_dft_seq_im, A_dft_hid_re, A_dft_hid_im, B_x, B_w1, B_w2):
    def _A_ref(x, dft_seq_re, dft_seq_im, dft_hid_re, dft_hid_im):
        a = torch.einsum("bsd,ed->bse", x, dft_hid_re)
        b = torch.einsum("bsd,ed->bse", x, dft_hid_im)
        y = torch.einsum("ts,bse->bte", dft_seq_re, a) - torch.einsum("ts,bse->bte", dft_seq_im, b)
        return y

    def _B_ref(x, w1, w2):
        h = torch.einsum("bsd,df->bsf", x, w1)
        zero = torch.zeros_like(h)
        h = torch.maximum(h, zero)
        return torch.einsum("bsf,fd->bsd", h, w2)

    x = A_x
    x = x + _A_ref(_layernorm(x, axis=-1), A_dft_seq_re, A_dft_seq_im, A_dft_hid_re, A_dft_hid_im)
    x = x + _B_ref(_layernorm(x, axis=-1), B_w1, B_w2)
    x = x + _A_ref(_layernorm(x, axis=-1), A_dft_seq_re, A_dft_seq_im, A_dft_hid_re, A_dft_hid_im)
    x = x + _B_ref(_layernorm(x, axis=-1), B_w1, B_w2)
    return x
```

```python
import re
def _r(p,i,n=1): return f"{p}{i}" if n==1 else f"{p}[{i}:{i+n-1}]"
def v(i,n=1): return _r("v",i,n)
def a(i,n=1): return _r("a",i,n)
def s(i,n=1): return _r("s",i,n)
_REG=re.compile(r"^(-|abs\()?([vas])(?:(\d+)|\[(\d+):(\d+)\])\)?$")
def regs(op):
    op=op.strip()
    if op in("vcc","exec","m0"): return [(op,0)]
    if op in("vcc_lo","vcc_hi"): return [("vcc",0)]
    m=_REG.match(op)
    if not m: return []
    p=m.group(2)
    if m.group(3) is not None: return [(p,int(m.group(3)))]
    return [(p,i) for i in range(int(m.group(4)),int(m.group(5))+1)]
TRANS=("v_exp_f32","v_log_f32","v_rcp_f32","v_rsq_f32","v_sqrt_f32","v_sin_f32","v_cos_f32")
class Ins:
    def __init__(s_,op,ops,mods="",comment=""):
        s_.op=op; s_.ops=[str(o) for o in ops]; s_.mods=mods; s_.comment=comment
    def text(s_):
        t="    "+s_.op
        if s_.ops: t+=" "+", ".join(s_.ops)
        if s_.mods: t+=" "+s_.mods
        if s_.comment: t+="    ; "+s_.comment
        return t
class Label:
    def __init__(s_,n): s_.name=n
    def text(s_): return s_.name+":"
class Raw:
    def __init__(s_,t): s_.t=t
    def text(s_): return s_.t
def classify(I):
    op=I.op; o=I.ops
    R=lambda idx:[x for i in idx if i<len(o) for x in regs(o[i])]
    allidx=range(len(o))
    if op.startswith("v_mfma"):
        passes=8 if "32x32" in op else 4
        return dict(kind="mfma",w=R([0]),ab=R([1,2]),c=R([3]),r=R([1,2,3]),passes=passes)
    if op.startswith("v_cmp"):
        return dict(kind="valu",w=R([0]),r=R([1,2]))
    if op in("v_readfirstlane_b32","v_readlane_b32"):
        return dict(kind="valu",w=R([0]),r=R([1,2]),rl=True)
    if op.startswith("v_permlane") or op=="v_swap_b32":
        return dict(kind="valu",w=R([0,1]),r=R([0,1]),perm=op.startswith("v_permlane"))
    if op.startswith("v_"):
        r=R(list(allidx)[1:])
        dpp=op.endswith("_dpp") or "row_" in I.mods or "quad_perm" in I.mods
        if op.startswith(("v_fmac","v_dot2c","v_pk_fmac")) or dpp or "op_sel" in I.mods: r=r+R([0])
        w=R([0])
        if "_co_" in op: w=R([0,1]); r=R(list(allidx)[2:])
        if op.startswith("v_cndmask") and len(o)==3: r=r+[("vcc",0)]
        return dict(kind="valu",w=w,r=r,dpp=dpp,trans=op.replace("_e32","").replace("_e64","") in TRANS)
    if op.startswith("ds_"):
        if op.startswith(("ds_read","ds_bpermute","ds_permute","ds_swizzle")): return dict(kind="ds",w=R([0]),r=R(list(allidx)[1:]))
        return dict(kind="ds",w=[],r=R(allidx))
    if op.startswith(("buffer_load","global_load")):
        if " lds" in " "+I.mods or "_lds_" in op: return dict(kind="vmem",w=[],r=R(allidx)+[("m0",0)],dma=True)
        return dict(kind="vmem",w=R([0]),r=R(list(allidx)[1:]))
    if op.startswith(("buffer_store","global_store","buffer_atomic","global_atomic")):
        di=0 if op.startswith("buffer") else 1
        wide=op.endswith(("x3","x4"))
        return dict(kind="vmem",w=[],r=R(allidx),sdata=R([di]) if wide else [])
    if op.startswith("s_"):
        if op.startswith(("s_cmp","s_cbranch","s_branch","s_waitcnt","s_barrier","s_nop","s_endpgm","s_setprio","s_sleep","s_bitcmp")):
            return dict(kind="salu",w=[],r=R(allidx))
        return dict(kind="salu",w=R([0]),r=R(list(allidx)[1:]))
    if op.startswith("buffer_"): return dict(kind="vmem",w=[],r=[])
    raise ValueError("unclassified "+op)

class Kern:
    def __init__(k,name):
        k.name=name; k.L=[]; k.vm=0; k.lg=0; k.nl=0
    def i(k,op,*ops,mods="",c=""):
        I=Ins(op,ops,mods,c); k.L.append(I)
        if op.startswith(("buffer_","global_")): k.vm+=1; return k.vm
        if op.startswith("ds_"): k.lg+=1; return k.lg
        return None
    def __getattr__(k,op):
        if op.startswith(("v_","s_","ds_","buffer_","global_")):
            return lambda *ops,mods="",c="": k.i(op,*ops,mods=mods,c=c)
        raise AttributeError(op)
    def label(k,n): k.L.append(Label(n))
    def newlabel(k,p="L"):
        k.nl+=1; return f"{p}_{k.name}_{k.nl}"
    def raw(k,t): k.L.append(Raw(t))
    def comment(k,t): k.L.append(Raw("    ; "+t))
    def wait(k,vm=None,lg=None):
        parts=[]
        if vm is not None: parts.append(f"vmcnt({min(63,k.vm-vm)})")
        if lg is not None: parts.append(f"lgkmcnt({min(15,k.lg-lg)})")
        k.L.append(Ins("s_waitcnt",[],mods=" ".join(parts)))
    def mfma(k,d,A,B,C): k.i("v_mfma_f32_16x16x32_bf16",d,A,B,C)
    def finalize(k):
        out=[]; pos=0; ev={}; snaps={}
        def need(key,dist):
            if key in ev: return max(0,dist-(pos-ev[key][0]-1))
            return 0
        for I in k.L:
            if isinstance(I,Label):
                for (sev,spos) in snaps.get(I.name,[]):
                    for key,val in sev.items():
                        eff=pos-(spos-val[0])
                        if key not in ev or ev[key][0]<eff: ev[key]=(eff,)+tuple(val[1:])
                out.append(I); continue
            if isinstance(I,Raw): out.append(I); continue
            c=classify(I); n=0; kind=c["kind"]
            for r in c["r"]:
                if kind=="mfma":
                    n=max(n,need(("vw",r),2))
                    if ("mw",r) in ev:
                        p=ev[("mw",r)][1]; dset=ev[("mw",r)][2]
                        if r in c["ab"]: n=max(n,need(("mw",r),8 if p==4 else 12))
                        if r in c["c"]:
                            if not(tuple(c["c"])==dset and p==c["passes"]): n=max(n,need(("mw",r),6 if p==4 else 10))
                else:
                    if ("mw",r) in ev: n=max(n,need(("mw",r),8 if ev[("mw",r)][1]==4 else 12))
                if kind=="valu":
                    if c.get("rl"): n=max(n,need(("vw",r),1))
                    if c.get("dpp") or c.get("perm"): n=max(n,need(("vw",r),2))
                    n=max(n,need(("tw",r),1))
                    if r[0] in("s","vcc"): n=max(n,need(("vsw",r),4 if c.get("rl") else 2))
                if kind in("vmem","ds","mfma"): n=max(n,need(("tw",r),1))
                if kind=="vmem" and r[0] in("s","vcc"): n=max(n,need(("vsw",r),5))
                if kind=="salu" and r[0] in("s","vcc"): n=max(n,need(("vsw",r),1))
                if r[0]=="m0" and c.get("dma"): n=max(n,need(("m0w",r),1))
            for r in c["w"]:
                if kind!="mfma":
                    if ("mw",r) in ev: n=max(n,need(("mw",r),8 if ev[("mw",r)][1]==4 else 12))
                    if ("mc",r) in ev: n=max(n,need(("mc",r),3 if ev[("mc",r)][1]==4 else 7))
                else:
                    if ("mw",r) in ev and r not in c["c"]: n=max(n,need(("mw",r),6 if ev[("mw",r)][1]==4 else 10))
                n=max(n,need(("sd",r),2))
            while n>0:
                t=min(n,16); out.append(Ins("s_nop",[str(t-1)])); pos+=t; n-=t
            out.append(I)
            for r in c["w"]:
                for kk in("vw","tw","mw","vsw"): ev.pop((kk,r),None)
                if kind=="valu":
                    if r[0] in("v","a"):
                        ev[("vw",r)]=(pos,)
                        if c.get("trans"): ev[("tw",r)]=(pos,)
                    else: ev[("vsw",r)]=(pos,)
                elif kind=="mfma": ev[("mw",r)]=(pos,c["passes"],tuple(c["w"]))
                elif kind=="salu" and r[0]=="m0": ev[("m0w",r)]=(pos,)
            if kind=="mfma":
                for r in c["c"]: ev[("mc",r)]=(pos,c["passes"])
            for r in c.get("sdata",[]): ev[("sd",r)]=(pos,)
            if I.op=="s_nop": pos+=int(I.ops[0])+1
            else: pos+=1
            if I.op.startswith(("s_cbranch","s_branch")):
                snaps.setdefault(I.ops[0],[]).append((dict(ev),pos))
            if len(ev)>4000:
                ev={kk:vv for kk,vv in ev.items() if pos-vv[0]<24}
        k.L=out
    def text(k):
        return "\n".join(x.text() for x in k.L)
    def maxreg(k,p):
        m=-1
        for I in k.L:
            if isinstance(I,Ins):
                for o in I.ops:
                    for (pp,i) in regs(o):
                        if pp==p: m=max(m,i)
        return m
def descriptor(name,nv,accum,nsg=102):
    return f""".amdhsa_kernel {name}
  .amdhsa_next_free_vgpr {nv}
  .amdhsa_next_free_sgpr {nsg}
  .amdhsa_accum_offset {accum}
  .amdhsa_group_segment_fixed_size 0
  .amdhsa_kernarg_size 88
  .amdhsa_user_sgpr_count 2
  .amdhsa_user_sgpr_kernarg_segment_ptr 1
  .amdhsa_system_sgpr_workgroup_id_x 1
.end_amdhsa_kernel"""
```

```python
import numpy as np
S,D,F=2048,640,1728
def bf16r(x):
    x=np.ascontiguousarray(x,dtype=np.float32)
    u=x.view(np.uint32)
    r=((u+0x7FFF+((u>>16)&1))&0xFFFF0000).astype(np.uint32)
    return r.view(np.float32)
def to_bits(x):
    return (bf16r(x).view(np.uint32)>>16).astype(np.uint16)
def from_bits(b):
    return (b.astype(np.uint32)<<16).view(np.float32)
def phi(ks,g): return 64*(ks>>1)+16*g+8*(ks&1)
def af_index(nks, colfn):
    c=np.arange(128)[:,None,None,None]; ks=np.arange(nks)[None,:,None,None]
    l=np.arange(64)[None,None,:,None]; j=np.arange(8)[None,None,None,:]
    rows=c+128*(l&15)+0*ks+0*j
    cols=colfn(ks,l>>4)+j+0*c
    return rows,cols
XR,XC=af_index(20,phi)
HR,HC=af_index(54,lambda hk,g:32*hk+8*g)
def x_to_af(x): return x[XR,XC]
def af_to_x(a):
    x=np.zeros((S,D),a.dtype); x[XR,XC]=a; return x
def h_to_af(h): return h[HR,HC]
def af_to_h(a):
    h=np.zeros((S,F),a.dtype); h[HR,HC]=a; return h
def w1p(w1):
    u=np.arange(54)[:,None,None,None,None]; ks=np.arange(20)[None,:,None,None,None]; mf=np.arange(2)[None,None,:,None,None]
    l=np.arange(64)[None,None,None,:,None]; j=np.arange(8)[None,None,None,None,:]
    m=l&15; g=l>>4
    return w1[phi(ks,g)+j+0*u+0*mf, 32*u+8*(m>>2)+4*mf+(m&3)+0*ks+0*j]
def ct_params(ct):
    if ct%2==0: ksA=5*ct//2; ksS=ksA+2; half=0
    else: ksS=(5*ct-1)//2; ksA=ksS+1; half=1
    return ksA,ksS,half
def cmap(ct,mf,m):
    ksA,ksS,half=ct_params(ct)
    gm=m>>2; r=m&3
    if mf<4: return phi(ksA+(mf>>1),gm)+4*(mf&1)+r
    return phi(ksS,2*half+(gm>>1))+4*(gm&1)+r
def w2p(w2):
    out=np.zeros((8,54,5,64,8),w2.dtype)
    l=np.arange(64); m=l&15; g=l>>4
    for ct in range(8):
        for mf in range(5):
            col=cmap(ct,mf,m)
            for hk in range(54):
                out[ct,hk,mf]=w2[(32*hk+8*g)[:,None]+np.arange(8)[None,:], col[:,None]]
    return out
def k1(x,hre,him):
    e=np.arange(320); e[0]=320
    a=x@hre[e].T; b=x@him[e].T
    mu=x.mean(1); var=(x*x).mean(1)-mu*mu
    rstd=1/np.sqrt(var+1e-5)
    a=bf16r(a*rstd[:,None]); b=bf16r(b*rstd[:,None])
    V=np.zeros((128,16,320,2),np.float32)
    t1=np.arange(128)
    for s2 in range(16):
        s=np.arange(s2,S,16)
        ph=(t1[:,None]*s[None,:])%2048/2048.0
        Tr=bf16r(np.cos(2*np.pi*ph)); Sn=bf16r(np.sin(2*np.pi*ph))
        V[:,s2,:,0]=Tr@a[s]+Sn@b[s]
        V[:,s2,:,1]=Tr@b[s]-Sn@a[s]
    return bf16r(V)
def st2(V,x):
    t2=np.arange(16); s2=np.arange(16)
    ph=(t2[:,None]*s2[None,:])%16/16.0
    C=bf16r(np.cos(2*np.pi*ph)); Sn=bf16r(np.sin(2*np.pi*ph))
    G=np.einsum('ts,cse->cte',C,V[...,0])+np.einsum('ts,cse->cte',Sn,V[...,1])
    Gt=np.zeros((S,320),np.float32)
    Gt[(np.arange(128)[:,None]+128*t2[None,:]).ravel()]=G.reshape(-1,320)
    y=np.zeros((S,D),np.float32)
    y[:,1:320]=Gt[:,1:320]
    neg=(S-np.arange(S))%S
    y[:,320]=Gt[neg,0]
    y[:,321:]=Gt[neg][:,319:0:-1]
    return x+y
def k2(V,x,w1):
    x1f=st2(V,x); x1=bf16r(x1f)
    mu=x1f.mean(1); var=(x1f*x1f).mean(1)-mu*mu; rstd=1/np.sqrt(var+1e-5)
    cs=w1.sum(0)
    h=(x1@w1-mu[:,None]*cs[None,:])*rstd[:,None]
    return x1,bf16r(np.maximum(h,0))
def k3(h,x1,w2): return bf16r(x1+h@w2)
def full(x,hre,him,w1,w2):
    V=k1(x,hre,him); x1,h=k2(V,x,w1); x2=k3(h,x1,w2)
    V=k1(x2,hre,him); x3,h=k2(V,x2,w1); return k3(h,x3,w2)
def ref64(x,w1,w2):
    x=x.astype(np.float64)
    def ln(x): return (x-x.mean(1,keepdims=True))/np.sqrt(x.var(1,keepdims=True)+1e-5)
    for _ in range(2):
        x=x+np.fft.fft2(ln(x)).real
        x=x+np.maximum(ln(x)@w1,0)@w2
    return x
if __name__=="__main__":
    rng=np.random.default_rng(0)
    x=bf16r(rng.standard_normal((S,D))*0.05); w1=bf16r(rng.standard_normal((D,F))*1.6); w2=bf16r(rng.standard_normal((F,D))*1.6)
    nd=np.arange(D)[:,None]*np.arange(D)[None,:]
    arg=(np.float32(-2*np.pi)*nd.astype(np.float32))/np.float32(D)
    hre=bf16r(np.cos(arg)); him=bf16r(np.sin(arg))
    print("colsum re max",np.abs(hre[1:321].sum(1)).max(),"im",np.abs(him[1:321].sum(1)).max())
    o=full(x,hre,him,w1,w2); r=ref64(x,w1,w2)
    print("rel l2",np.linalg.norm(o-r)/np.linalg.norm(r),"max abs",np.abs(o-r).max(),"max ref",np.abs(r).max(), "std",r.std())
```

```python
import sys, struct
from asmlib import *
NAME="interleave_layers__spectral_fnet__dense_activation_relu__prompt"
S,D,F=2048,640,1728
XSZ=S*D*2
WS_XA=0
WS_V=WS_XA+XSZ
WS_X1=WS_V+XSZ
WS_H=WS_X1+XSZ
HSZ=128*54*1024
WS_W1P=WS_H+HSZ
WPSZ=54*40*1024
WS_W2P=WS_W1P+WPSZ
WS_CS1=WS_W2P+WPSZ
CSSZ=F*4
WS_END=WS_CS1+CSSZ
def f32(x): return "0x%08x"%struct.unpack("<I",struct.pack("<f",x))[0]
OOB=0x40000000

def srd(k,d,b,off,size):
    if off:
        k.s_add_u32(s(d),s(b),off); k.s_addc_u32(s(d+1),s(b+1),0)
    else:
        k.s_mov_b32(s(d),s(b)); k.s_mov_b32(s(d+1),s(b+1))
    k.s_mov_b32(s(d+2),size); k.s_mov_b32(s(d+3),"0x20000")

def cls_of(k,dst,snf,sp0,t0,t1):
    k.s_lshr_b32(s(t0),s(snf),1); k.s_add_u32(s(t0),s(t0),s(sp0))
    k.s_sub_u32(s(t1),128,s(t0))
    k.s_cmp_eq_u32(s(t0),0); k.s_cselect_b32(s(t1),64,s(t1))
    k.s_bitcmp1_b32(s(snf),0); k.s_cselect_b32(s(dst),s(t1),s(t0))

def rbct(k,srb,sct,t):
    k.s_and_b32(s(srb),s(2),7); k.s_lshl_b32(s(srb),s(srb),2)
    k.s_lshr_b32(s(t),s(2),3); k.s_lshr_b32(s(sct),s(t),2)
    k.s_and_b32(s(t),s(t),3); k.s_add_u32(s(srb),s(srb),s(t))

def gen_k3(name,final):
    k=Kern(name); END=k.newlabel("end")
    k.s_cmp_ge_u32(s(2),256); k.s_cbranch_scc1(END)
    k.s_load_dwordx2(s(4,2),s(0,2),80)
    if final: k.s_load_dwordx2(s(6,2),s(0,2),64)
    sW,sRB,sCT,sP0=3,24,25,26
    k.v_lshrrev_b32(v(2),6,v(0)); k.v_and_b32(v(0),63,v(0)); k.v_readfirstlane_b32(s(sW),v(2))
    k.v_lshlrev_b32(v(1),4,v(0))
    rbct(k,sRB,sCT,27)
    k.s_lshl_b32(s(sP0),s(sRB),1)
    sC=28
    for nu in range(4):
        k.s_add_u32(s(32),s(sW),nu); k.s_and_b32(s(32),s(32),3)
        cls_of(k,sC+nu,32,sP0,33,34)
        k.s_mul_i32(s(33),s(sC+nu),54*1024); k.v_add_u32(v(2+nu),s(33),v(1))
        if nu:
            k.s_mul_i32(s(33),s(32),15360); k.s_add_u32(s(33),s(33),(nu-1)*5120); k.v_add_u32(v(7+nu),s(33),v(1))
        else:
            k.s_mul_i32(s(33),s(32),15360); k.v_add_u32(v(11),s(33),v(1))
    k.s_mul_i32(s(33),s(sCT),54*5120); k.v_add_u32(v(6),s(33),v(1)); k.v_add_u32(v(7),4096,v(6))
    sKA,sKS,sHF=36,37,38
    k.s_mul_i32(s(33),s(sCT),5); k.s_lshr_b32(s(33),s(33),1)
    k.s_and_b32(s(sHF),s(sCT),1)
    k.s_add_u32(s(sKA),s(33),s(sHF))
    k.s_add_u32(s(34),s(33),2); k.s_cmp_eq_u32(s(sHF),0); k.s_cselect_b32(s(sKS),s(34),s(33))
    k.v_and_b32(v(15),15,v(0))
    k.v_lshrrev_b32(v(46),4,v(0))
    k.s_mul_i32(s(33),s(sC),20)
    k.s_add_u32(s(34),s(33),s(sKA)); k.s_lshl_b32(s(34),s(34),10); k.v_add_u32(v(12),s(34),v(1))
    k.s_add_u32(s(34),s(33),s(sKS)); k.s_lshl_b32(s(34),s(34),10)
    k.s_lshl_b32(s(35),s(sHF),9); k.s_add_u32(s(34),s(34),s(35))
    k.v_lshrrev_b32(v(47),1,v(46)); k.v_lshlrev_b32(v(47),8,v(47))
    k.v_lshl_add_u32(v(13),v(15),4,v(47))
    k.v_and_b32(v(47),1,v(46)); k.v_lshl_add_u32(v(13),v(47),3,v(13))
    k.v_add_u32(v(13),s(34),v(13))
    k.s_waitcnt(mods="lgkmcnt(0)")
    SH,SWp,SX,SO=8,12,16,20
    srd(k,SH,4,WS_H,HSZ); srd(k,SWp,4,WS_W2P,WPSZ); srd(k,SX,4,WS_X1,XSZ)
    if final: srd(k,SO,6,0,XSZ)
    else: srd(k,SO,4,WS_XA,XSZ)
    RES=36
    k.buffer_load_dwordx4(v(RES,4),v(12),s(SX,4),0,mods="offen")
    k.buffer_load_dwordx4(v(RES+4,4),v(12),s(SX,4),0,mods="offen offset:1024")
    tres=k.buffer_load_dwordx2(v(RES+8,2),v(13),s(SX,4),0,mods="offen")
    NB=8; PD=6
    def buf(b,f):
        return v(48+b*36+f*4,4) if b<5 else a(60+(b-5)*36+f*4,4)
    sHK=40
    k.s_and_b32(s(33),s(sRB),3); k.s_mul_i32(s(33),s(33),2); k.s_add_u32(s(33),s(33),s(sCT)); k.s_and_b32(s(33),s(33),7)
    k.s_mul_i32(s(33),s(33),7); k.s_add_u32(s(sHK),s(33),s(sW))
    tok={}
    def issue(i):
        if i>0:
            k.s_add_u32(s(sHK),s(sHK),4); k.s_sub_u32(s(41),s(sHK),54)
            k.s_cmp_ge_u32(s(sHK),54); k.s_cselect_b32(s(sHK),s(41),s(sHK))
        k.s_lshl_b32(s(42),s(sHK),10); k.s_mul_i32(s(43),s(sHK),5120)
        if i==13:
            k.s_cmp_ge_u32(s(sW),2); k.s_cselect_b32(s(42),OOB,s(42)); k.s_cselect_b32(s(43),OOB,s(43))
        b=i%NB
        for nu in range(4):
            k.buffer_load_dwordx4(buf(b,5+nu),v(2+nu),s(SH,4),s(42),mods="offen")
            k.buffer_load_dwordx4(buf(b,nu),v(6),s(SWp,4),s(43),mods=f"offen offset:{nu*1024}" if nu else "offen")
        tok[i]=k.buffer_load_dwordx4(buf(b,4),v(7),s(SWp,4),s(43),mods="offen")
    for i in range(PD): issue(i)
    if final:
        k.v_lshlrev_b32(v(47),7,v(15)); k.v_add_u32(v(47),s(sC),v(47)); k.s_movk_i32(s(33),1280); k.v_mul_lo_u32(v(47),v(47),s(33))
        def colb(dst,sks,add):
            k.s_add_u32(s(35),s(sks),add)
            k.s_lshr_b32(s(dst),s(35),1); k.s_lshl_b32(s(dst),s(dst),7)
            k.s_and_b32(s(35),s(35),1); k.s_lshl_b32(s(35),s(35),4); k.s_add_u32(s(dst),s(dst),s(35))
        colb(44,sKA,0); colb(45,sKA,1); colb(46,sKS,0)
        k.s_lshl_b32(s(35),s(sHF),6); k.s_add_u32(s(46),s(46),s(35))
        k.v_lshl_add_u32(v(14),v(46),5,v(47))
        k.v_lshrrev_b32(v(15),1,v(46)); k.v_lshl_add_u32(v(47),v(15),5,v(47))
        k.v_and_b32(v(15),1,v(46)); k.v_lshl_add_u32(v(15),v(15),3,v(47))
    def acc(nu,mf): return v(16+mf*4,4) if nu==0 else a((nu-1)*20+mf*4,4)
    for r in range(60): k.v_accvgpr_write_b32(a(r),0)
    k.wait(vm=tres)
    for d in range(10):
        k.v_lshlrev_b32(v(16+2*d),16,v(RES+d)); k.v_and_b32(v(16+2*d+1),"0xffff0000",v(RES+d))
    for i in range(14):
        k.wait(vm=tok[i])
        if i+PD<14: issue(i+PD)
        b=i%NB
        for nu in (1,2,3,0):
            for mf in range(5): k.mfma(acc(nu,mf),buf(b,mf),buf(b,5+nu),acc(nu,mf))
    for nu in (1,2,3):
        for mf in range(5): t=k.ds_write_b128(v(7+nu),acc(nu,mf),mods=f"offset:{mf*1024}")
    k.wait(lg=t); k.s_barrier()
    rt={}
    for mf in range(5):
        for sl in range(3): rt[mf]=k.ds_read_b128(v(48+(mf*3+sl)*4,4),v(11),mods=f"offset:{sl*5120+mf*1024}")
    for mf in range(5):
        k.wait(lg=rt[mf])
        b0=48+mf*12
        for h in range(2):
            k.v_pk_add_f32(v(b0+2*h,2),v(b0+2*h,2),v(b0+4+2*h,2))
            k.v_pk_add_f32(v(16+mf*4+2*h,2),v(16+mf*4+2*h,2),v(b0+8+2*h,2))
        for h in range(2):
            k.v_pk_add_f32(v(16+mf*4+2*h,2),v(16+mf*4+2*h,2),v(b0+2*h,2))
        for h in range(2):
            k.v_cvt_pk_bf16_f32(v(RES+mf*2+h),v(16+mf*4+2*h),v(16+mf*4+2*h+1))
        if mf==1:
            if final: k.buffer_store_dwordx4(v(RES,4),v(14),s(SO,4),s(44),mods="offen")
            else: k.buffer_store_dwordx4(v(RES,4),v(12),s(SO,4),0,mods="offen")
        if mf==3:
            if final: k.buffer_store_dwordx4(v(RES+4,4),v(14),s(SO,4),s(45),mods="offen")
            else: k.buffer_store_dwordx4(v(RES+4,4),v(12),s(SO,4),0,mods="offen offset:1024")
        if mf==4:
            if final: k.buffer_store_dwordx2(v(RES+8,2),v(15),s(SO,4),s(46),mods="offen")
            else: k.buffer_store_dwordx2(v(RES+8,2),v(13),s(SO,4),0,mods="offen")
    k.label(END); k.s_endpgm()
    k.finalize()
    return k,dict(grid=256,block=256,lds=61440,accum=256)

def gen_k2(name):
    k=Kern(name); END=k.newlabel("end"); HELP=k.newlabel("help"); SKIP0=k.newlabel("skipA"); SKIP1=k.newlabel("skipB"); NOW=k.newlabel("now"); NOW2=k.newlabel("now2")
    STATS=81920; DUMMY=STATS+512
    k.s_cmp_ge_u32(s(2),256); k.s_cbranch_scc1(END)
    k.s_load_dwordx2(s(4,2),s(0,2),80)
    sW,sRB,sCT,sP0,sSG,sHI,sCS,sSM,sCM=3,28,29,30,31,32,33,34,35
    k.v_lshrrev_b32(v(2),6,v(0)); k.v_and_b32(v(0),63,v(0)); k.v_readfirstlane_b32(s(sW),v(2))
    k.v_lshlrev_b32(v(1),4,v(0))
    k.v_and_b32(v(2),15,v(0))
    k.v_lshrrev_b32(v(3),4,v(0))
    rbct(k,sRB,sCT,36)
    k.s_lshl_b32(s(sP0),s(sRB),1)
    k.s_and_b32(s(sSG),s(sW),3); k.s_lshr_b32(s(sHI),s(sW),2)
    cls_of(k,sCS,sSG,sP0,36,37)
    k.s_xor_b32(s(sSM),s(sSG),1)
    k.s_lshr_b32(s(36),s(sSG),1); k.s_or_b32(s(36),s(36),s(sRB)); k.s_cmp_eq_u32(s(36),0); k.s_cselect_b32(s(sSM),s(sSG),s(sSM))
    cls_of(k,sCM,sSM,sP0,36,37)
    k.v_mul_u32_u24(v(4),5120,v(3)); k.v_lshl_add_u32(v(4),v(2),4,v(4))
    k.v_xor_b32(v(5),0x300,v(1))
    sQ=38
    k.s_mov_b32(s(sQ),2); k.s_mul_i32(s(sQ+1),s(sHI),3); k.s_add_u32(s(sQ+2),s(sQ+1),1)
    k.v_lshrrev_b32(v(7),2,v(2))
    k.v_add_u32(v(8),s(sQ+1),v(7))
    k.v_cmp_eq_u32("vcc",0,v(7)); k.v_cndmask_b32(v(8),v(8),3,"vcc")
    k.v_cmp_le_u32("vcc",5,v(8)); k.v_cndmask_b32(v(8),v(8),0,"vcc")
    k.v_and_b32(v(7),3,v(2)); k.v_lshl_add_u32(v(7),v(3),2,v(7)); k.v_mul_u32_u24(v(7),1280,v(7))
    k.v_lshl_add_u32(v(6),v(8),8,v(7))
    k.s_waitcnt(mods="lgkmcnt(0)")
    SV,SX,SWp,SH,SX1,SCS=8,12,16,20,24,44
    srd(k,SV,4,WS_V,XSZ); srd(k,SX,4,WS_XA,XSZ); srd(k,SWp,4,WS_W1P,WPSZ)
    sVB,sXD,sXM=48,49,50
    k.s_mul_i32(s(sVB),s(sCS),20480); k.s_mul_i32(s(sXM),s(sCM),20480); k.s_add_u32(s(sXM),s(sXM),18*1024)
    UB=[24,56,88]
    BND=9
    utok={}
    def uload(u):
        b=UB[u]
        k.s_lshl_b32(s(36),s(sQ+u),8); k.s_add_u32(s(36),s(36),s(sVB))
        k.s_lshl_b32(s(37),s(sQ+u),11); k.s_sub_u32(s(41),s(sXM),s(37)); k.s_add_u32(s(37),s(37),s(sVB))
        for j in range(4): k.buffer_load_dwordx4(v(b+4*j,4),v(4),s(SV,4),s(36),mods=f"offen offset:{j*1280}" if j else "offen")
        k.buffer_load_dwordx4(v(b+16,4),v(1),s(SX,4),s(37),mods="offen")
        k.buffer_load_dwordx4(v(b+20,4),v(1),s(SX,4),s(37),mods="offen offset:1024")
        k.buffer_load_dwordx4(v(b+24,4),v(5),s(SX,4),s(41),mods="offen")
        utok[u]=k.buffer_load_dwordx4(v(b+28,4),v(5),s(SX,4),s(41),mods="offen offset:1024")
    k.buffer_load_dword(v(BND),v(6),s(SV,4),s(sVB),mods="offen")
    k.s_cmp_lg_u32(s(sHI),0); k.s_cbranch_scc1(SKIP0)
    uload(0)
    k.label(SKIP0)
    uload(1); uload(2)
    sU,sWB,sKS=51,52,53
    k.s_mul_i32(s(sU),s(sCT),7); k.s_cmp_eq_u32(s(sCT),7); k.s_cselect_b32(s(sU),48,s(sU)); k.s_add_u32(s(sU),s(sU),s(sW))
    k.s_mul_i32(s(sWB),s(sU),40960)
    k.s_cmp_ge_u32(s(sCT),6); k.s_cselect_b32(s(36),6,7); k.s_cmp_ge_u32(s(sW),s(36)); k.s_cselect_b32(s(54),1,0)
    k.s_cselect_b32(s(sWB),OOB,s(sWB))
    sROT=55
    k.s_and_b32(s(sROT),s(sRB),3); k.s_mul_i32(s(sROT),s(sROT),5)
    k.s_mov_b32(s(sKS),s(sROT))
    def wreg(i,mf): return a(i*8+mf*4,4) if i<12 else v(56+(i-12)*8+mf*4,4)
    wtok={}
    def wload(i):
        if i>0:
            k.s_add_u32(s(sKS),s(sKS),1); k.s_cmp_eq_u32(s(sKS),20); k.s_cselect_b32(s(sKS),0,s(sKS))
        k.s_lshl_b32(s(36),s(sKS),11); k.s_add_u32(s(36),s(36),s(sWB))
        k.buffer_load_dwordx4(wreg(i,0),v(1),s(SWp,4),s(36),mods="offen")
        wtok[i]=k.buffer_load_dwordx4(wreg(i,1),v(1),s(SWp,4),s(36),mods="offen offset:1024")
    for i in range(12): wload(i)
    srd(k,SH,4,WS_H,HSZ); srd(k,SX1,4,WS_X1,XSZ); srd(k,SCS,4,WS_CS1,CSSZ)
    k.v_cvt_f32_u32(v(10),v(2)); k.v_mul_f32(v(10),f32(1/16),v(10))
    k.s_cmp_eq_u32(s(sCS),0); k.s_cselect_b32(s(36),f32(1.0),f32(15/16))
    k.v_sub_f32(v(11),s(36),v(10))
    k.v_lshlrev_b32(v(12),2,v(3)); k.v_cvt_f32_u32(v(12),v(12))
    for jj in range(4):
        k.v_add_f32(v(13),f32(jj) if jj==3 else ("0" if jj==0 else f"{jj}.0"),v(12))
        for mi in range(2):
            k.v_mul_f32(v(14),v(13),v(10+mi))
            k.v_cos_f32(v(15),v(14)); k.v_sin_f32(v(14),v(14))
            k.v_cvt_pk_bf16_f32(v(16+4*mi+jj),v(15),v(14))
    k.v_add_u32(v(10),s(sHI),v(2)); k.v_cmp_eq_u32("vcc",0,v(10)); k.v_cndmask_b32(v(10),-1,0,"vcc")
    k.s_lshl_b32(s(36),s(sSG),10); k.v_add_u32(v(11),s(36),v(1))
    k.s_lshl_b32(s(36),s(sSM),10); k.s_add_u32(s(36),s(36),18*4096); k.v_add_u32(v(12),s(36),v(5))
    F4=120; CD=124; CM=140
    def uproc(u):
        b=UB[u]
        k.wait(vm=utok[u])
        for j in range(4):
            k.v_mov_b32_dpp(v(F4+j),v(BND),mods=f"row_shr:{15-4*u-j} row_mask:0xf bank_mask:0xf")
        for j in range(4):
            k.v_mov_b32_dpp(v(F4+j),v(b+4*j),mods="row_shl:1 row_mask:0xf bank_mask:0xf")
        for x in range(4):
            for y in range(x+1,4): k.v_swap_b32(v(b+4*x+y),v(b+4*y+x))
        if u==1:
            for j in range(4): k.v_and_b32(v(b+j),v(10),v(b+j))
        def unpack(dst,src,hi):
            if hi: k.v_and_b32(v(dst),"0xffff0000",v(src))
            else: k.v_lshlrev_b32(v(dst),16,v(src))
        for i in range(4):
            for r in range(4):
                dl=4*r+i; unpack(CD+4*i+r,b+16+(dl>>1),dl&1)
            k.mfma(v(CD+4*i,4),v(b+4*i,4),v(16,4),v(CD+4*i,4))
        for i in range(1,5):
            for r in range(4):
                o=16-(4*r+i); unpack(CM+4*(i-1)+r,b+24+(o>>1),o&1)
            k.mfma(v(CM+4*(i-1),4),v(b+4*i,4) if i<4 else v(F4,4),v(20,4),v(CM+4*(i-1),4))
        k.s_lshl_b32(s(36),s(sQ+u),13)
        k.v_add_u32(v(13),s(36),v(11)); k.v_subrev_u32(v(14),s(36),v(12))
        for d in range(8):
            lo,hi=2*d,2*d+1
            k.v_cvt_pk_bf16_f32(v(b+16+d),v(CD+4*(lo&3)+(lo>>2)),v(CD+4*(hi&3)+(hi>>2)))
            if d==3: k.ds_write_b128(v(13),v(b+16,4))
            if d==7: k.ds_write_b128(v(13),v(b+20,4),mods="offset:4096")
        def mreg(o):
            dl=16-o; i=((dl-1)&3)+1; r=(dl-i)>>2; return CM+4*(i-1)+r
        for d in range(8):
            k.v_cvt_pk_bf16_f32(v(b+24+d),v(mreg(2*d)),v(mreg(2*d+1)))
            if d==3: k.ds_write_b128(v(14),v(b+24,4))
            if d==7: t=k.ds_write_b128(v(14),v(b+28,4),mods="offset:4096")
        return t
    k.s_cmp_lg_u32(s(sHI),0); k.s_cbranch_scc1(SKIP1)
    uproc(0)
    k.label(SKIP1)
    uproc(1); t=uproc(2)
    k.wait(lg=t)
    k.s_cmp_eq_u32(s(sW),7); k.s_cbranch_scc1(HELP)
    for i in range(12,20): wload(i)
    k.s_lshl_b32(s(36),s(sU),7); k.v_lshlrev_b32(v(13),5,v(3))
    k.buffer_load_dwordx4(v(16,4),v(13),s(SCS,4),s(36),mods="offen")
    cstok=k.buffer_load_dwordx4(v(20,4),v(13),s(SCS,4),s(36),mods="offen offset:16")
    k.s_barrier()
    ACC=120
    def acc(nf,mf): return v(ACC+(nf*2+mf)*4,4)
    XB=[24,40]
    k.s_mov_b32(s(sKS),s(sROT))
    xt={}
    def xread(i):
        if i>0:
            k.s_add_u32(s(sKS),s(sKS),1); k.s_cmp_eq_u32(s(sKS),20); k.s_cselect_b32(s(sKS),0,s(sKS))
        k.s_lshl_b32(s(36),s(sKS),12); k.v_add_u32(v(13+(i&1)),s(36),v(1))
        for nf in range(4): xt[i]=k.ds_read_b128(v(XB[i&1]+4*nf,4),v(13+(i&1)),mods=f"offset:{nf*1024}")
    xread(0)
    for i in range(20):
        if i+1<20: xread(i+1)
        k.wait(vm=wtok[i],lg=xt[i])
        for nf in range(4):
            for mf in range(2):
                k.mfma(acc(nf,mf),wreg(i,mf),v(XB[i&1]+4*nf,4),acc(nf,mf) if i else "0")
    for nf in range(4):
        k.s_mov_b32(s(36),nf); cls_of(k,56+nf,36,sP0,37,41)
        k.s_mul_i32(s(56+nf),s(56+nf),54); k.s_add_u32(s(56+nf),s(56+nf),s(sU)); k.s_lshl_b32(s(56+nf),s(56+nf),10)
        k.s_cmp_lg_u32(s(54),0); k.s_cselect_b32(s(56+nf),OOB,s(56+nf))
    k.v_lshlrev_b32(v(13),3,v(2))
    k.s_barrier()
    st={}
    for nf in range(4): st[nf]=k.ds_read_b64(v(24+2*nf,2),v(13),mods=f"offset:{STATS-65536+nf*128}") if False else None
    k.v_add_u32(v(13),STATS,v(13))
    for nf in range(4): st[nf]=k.ds_read_b64(v(24+2*nf,2),v(13),mods=f"offset:{nf*128}")
    k.wait(vm=cstok)
    for nf in range(4):
        k.wait(lg=st[nf])
        for mf in range(2):
            for r in range(4):
                x=ACC+(nf*2+mf)*4+r
                k.v_mul_f32(v(x),v(24+2*nf),v(x))
            for r in range(4):
                x=ACC+(nf*2+mf)*4+r
                k.v_fma_f32(v(x),v(25+2*nf),v(16+mf*4+r),v(x))
            for r in range(4):
                x=ACC+(nf*2+mf)*4+r
                k.v_max_f32(v(x),0,v(x))
            for h in range(2):
                x=ACC+(nf*2+mf)*4+2*h
                k.v_cvt_pk_bf16_f32(v(40+nf*4+mf*2+h),v(x),v(x+1))
        k.buffer_store_dwordx4(v(40+nf*4,4),v(1),s(SH,4),s(56+nf),mods="offen")
    k.s_endpgm()
    k.label(HELP)
    for j in range(4): k.v_mov_b32(v(16+j),"0x3f803f80")
    k.s_barrier()
    k.s_mul_i32(s(42),s(sCT),10)
    k.s_lshl_b32(s(36),s(42),10); k.v_add_u32(v(13),s(36),v(1))
    tk={}
    for j in range(10): tk[j]=k.ds_read_b128(v(56+4*j,4),v(13),mods=f"offset:{j*1024}")
    for j in range(10):
        k.s_add_u32(s(43),s(42),j); k.s_and_b32(s(36),s(43),3); cls_of(k,56,36,sP0,37,41)
        k.s_mul_i32(s(56),s(56),20); k.s_lshr_b32(s(43),s(43),2); k.s_add_u32(s(56),s(56),s(43)); k.s_lshl_b32(s(56),s(56),10)
        k.wait(lg=tk[j])
        k.buffer_store_dwordx4(v(56+4*j,4),v(1),s(SX1,4),s(56),mods="offen")
    k.v_add_u32(v(14),40960,v(1))
    def hread(i):
        for nf in range(4): xt[i]=k.ds_read_b128(v(XB[i&1]+4*nf,4),v(1) if i<10 else v(14),mods=f"offset:{(i%10)*4096+nf*1024}")
    hread(0)
    for i in range(20):
        if i+1<20: hread(i+1)
        k.wait(lg=xt[i])
        for nf in range(4):
            x=v(XB[i&1]+4*nf,4)
            k.mfma(acc(nf,0),x,x,acc(nf,0) if i else "0")
            k.mfma(acc(nf,1),v(16,4),x,acc(nf,1) if i else "0")
    k.v_and_b32(v(13),3,v(2))
    k.v_cmp_eq_u32(s(56,2),1,v(13)); k.v_cmp_eq_u32(s(58,2),2,v(13)); k.v_cmp_eq_u32(s(60,2),3,v(13))
    k.v_lshrrev_b32(v(13),2,v(2)); k.v_cmp_eq_u32("vcc",v(13),v(3))
    k.v_lshlrev_b32(v(13),3,v(2)); k.v_add_u32(v(13),STATS,v(13))
    k.v_lshlrev_b32(v(14),3,v(0)); k.v_add_u32(v(14),DUMMY,v(14))
    k.v_cndmask_b32(v(13),v(14),v(13),"vcc")
    k.s_mov_b32(s(36),f32(1/640)); k.v_mov_b32(v(15),f32(1e-5))
    for nf in range(4):
        g0=ACC+nf*8; sm=g0+4
        k.v_cndmask_b32(v(g0),v(g0),v(g0+1),s(56,2)); k.v_cndmask_b32(v(g0),v(g0),v(g0+2),s(58,2)); k.v_cndmask_b32(v(g0),v(g0),v(g0+3),s(60,2))
        k.v_mul_f32(v(sm),s(36),v(sm))
        k.v_fma_f32(v(g0),v(g0),s(36),v(15))
        k.v_fma_f32(v(g0),"-"+v(sm),v(sm),v(g0))
        k.v_max_f32(v(g0),v(15),v(g0))
        k.v_rsq_f32(v(g0),v(g0))
        k.v_mul_f32(v(g0+1),"-"+v(sm),v(g0)) if False else k.i("v_mul_f32_e64",v(g0+1),"-"+v(sm),v(g0))
        t=k.ds_write_b64(v(13),v(g0,2),mods=f"offset:{nf*128}")
    k.wait(lg=t); k.s_barrier()
    k.label(END); k.s_endpgm()
    k.finalize()
    return k,dict(grid=256,block=512,lds=STATS+512+512+512,accum=160)

def gen_k1(name,first):
    k=Kern(name); END=k.newlabel("end"); PREP=k.newlabel("prep"); PREP2=k.newlabel("prep2")
    NW=160+54 if first else 160
    k.s_cmp_ge_u32(s(2),NW); k.s_cbranch_scc1(END)
    k.s_load_dwordx2(s(4,2),s(0,2),80)
    k.s_load_dwordx4(s(24,4),s(0,2),24)
    if first:
        k.s_load_dwordx2(s(6,2),s(0,2),0)
        k.s_load_dwordx4(s(28,4),s(0,2),48)
    sW,sS2,sET=3,32,33
    k.v_lshrrev_b32(v(2),6,v(0)); k.v_and_b32(v(0),63,v(0)); k.v_readfirstlane_b32(s(sW),v(2))
    k.v_lshlrev_b32(v(1),4,v(0)); k.v_and_b32(v(2),15,v(0)); k.v_lshrrev_b32(v(3),4,v(0))
    k.v_lshrrev_b32(v(4),3,v(0))
    k.v_and_b32(v(5),7,v(0))
    if first:
        k.s_cmp_ge_u32(s(2),160); k.s_cbranch_scc1(PREP)
    k.s_and_b32(s(sS2),s(2),7); k.s_lshl_b32(s(sS2),s(sS2),1); k.s_lshr_b32(s(34),s(2),3)
    k.s_lshr_b32(s(sET),s(34),1); k.s_and_b32(s(34),s(34),1); k.s_add_u32(s(sS2),s(sS2),s(34))
    def swz(dst,src,t):
        k.v_bfe_u32(v(t),v(src),1,1); k.v_and_or_b32(v(dst),v(src),4,v(t))
    swz(6,4,7); k.v_xor_b32(v(6),v(6),v(5)); k.v_lshlrev_b32(v(6),4,v(6))
    k.s_lshl_b32(s(34),s(sET),5); k.s_and_b32(s(35),s(sW),1); k.s_lshl_b32(s(35),s(35),4); k.s_add_u32(s(34),s(34),s(35))
    k.v_add_u32(v(8),s(34),v(4)); k.v_add_u32(v(9),8,v(8))
    k.v_mov_b32(v(7),320); k.v_cmp_eq_u32("vcc",0,v(8)); k.v_cndmask_b32(v(8),v(8),v(7),"vcc")
    k.v_mul_u32_u24(v(8),1280,v(8)); k.v_mul_u32_u24(v(9),1280,v(9)); k.v_add_u32(v(8),v(8),v(6)); k.v_add_u32(v(9),v(9),v(6))
    if first:
        k.s_mov_b32(s(34),128*1280); k.v_mul_lo_u32(v(10),v(4),s(34)); k.v_add_u32(v(10),v(10),v(6))
    k.s_waitcnt(mods="lgkmcnt(0)")
    SR,SX,SV,SXA=8,12,16,20
    k.s_cmp_ge_u32(s(sW),2); k.s_cselect_b32(s(SR),s(26),s(24)); k.s_cselect_b32(s(SR+1),s(27),s(25))
    k.s_mov_b32(s(SR+2),D*D*2); k.s_mov_b32(s(SR+3),"0x20000")
    if first: srd(k,SX,6,0,XSZ); srd(k,SXA,4,WS_XA,XSZ)
    else: srd(k,SX,4,WS_XA,XSZ)
    srd(k,SV,4,WS_V,XSZ)
    XST=81920
    sC0=36
    k.s_lshl_b32(s(sC0),s(sW),5); k.s_add_u32(s(sC0),s(sC0),s(sS2))
    sQR,sQX,sM,sXB,sLX=37,38,39,40,41
    k.s_mov_b32(s(sQR),s(sET)); k.s_mov_b32(s(sQX),s(sET))
    k.s_lshl_b32(s(sM),s(sW),11)
    if first:
        k.s_mul_i32(s(sXB),s(sC0),1280)
        k.s_lshl_b32(s(sLX),s(sW),14); k.s_add_u32(s(sLX),s(sLX),XST)
    else:
        k.s_mul_i32(s(sXB),s(sC0),20480)
    rtok={}; xtok={}
    def adv(r):
        k.s_add_u32(s(r),s(r),1); k.s_cmp_eq_u32(s(r),10); k.s_cselect_b32(s(r),0,s(r))
    def rload(i):
        if i: adv(sQR)
        k.s_lshl_b32(s(34),s(sQR),7)
        for rg in range(2):
            k.s_add_u32("m0",s(sM),i*8192+rg*1024)
            rtok[i]=k.buffer_load_dwordx4(v(8+rg),s(SR,4),s(34),mods="offen lds")
    XR=96
    def xreg(i,u,b): return v(XR+i*16+(b*2+u)*4,4) if not first else v(XR+(i&1)*16+(b*2+u)*4,4)
    def xload(i):
        if i: adv(sQX)
        if first:
            k.s_lshl_b32(s(34),s(sQX),7); k.s_add_u32(s(34),s(34),s(sXB))
            for u in range(2):
                for h in range(2):
                    k.s_add_u32("m0",s(sLX),(i&3)*4096+u*2048+h*1024)
                    k.s_add_u32(s(35),s(34),(16*u+1024*h)*1280)
                    xtok[i]=k.buffer_load_dwordx4(v(10),s(SX,4),s(35),mods="offen lds")
        else:
            k.s_lshl_b32(s(34),s(sQX),11); k.s_add_u32(s(34),s(34),s(sXB)); k.s_add_u32(s(35),s(34),16*20480)
            for b in range(2):
                for u in range(2):
                    xtok[i]=k.buffer_load_dwordx4(xreg(i,u,b),v(1),s(SX,4),s(34+u),mods=f"offen offset:{b*1024}" if b else "offen")
    if first:
        for i in range(4): rload(i); xload(i)
        for i in range(4,10): rload(i)
    else:
        for i in range(10): rload(i); xload(i)
    k.v_and_b32(v(11),7,v(2)); swz(12,11,7); k.v_lshlrev_b32(v(13),1,v(3)); k.v_xor_b32(v(12),v(12),v(13)); k.v_lshlrev_b32(v(12),4,v(12))
    k.v_lshl_add_u32(v(12),v(11),7,v(12)); k.v_lshrrev_b32(v(11),3,v(2)); k.v_lshl_add_u32(v(12),v(11),10,v(12))
    k.v_xor_b32(v(13),16,v(12))
    k.v_add_u32(v(14),40960,v(12)); k.v_add_u32(v(15),40960,v(13))
    if first:
        k.v_add_u32(v(16),s(sLX),v(12)); k.v_add_u32(v(17),s(sLX),v(13))
    for j in range(4): k.v_mov_b32(v(20+j),"0x3f803f80")
    k.s_lshl_b32(s(34),s(sW),5); k.v_add_u32(v(24),s(34),v(2)); k.v_cvt_f32_u32(v(24),v(24)); k.v_mul_f32(v(24),f32(1/2048),v(24))
    k.v_add_f32(v(25),f32(16/2048),v(24))
    k.v_lshlrev_b32(v(26),9,v(3)); k.v_add_u32(v(26),s(sS2),v(26)); k.v_cvt_f32_u32(v(26),v(26))
    k.v_mul_f32(v(27),v(26),v(25)); k.v_mul_f32(v(26),v(26),v(24))
    for tf in range(2):
        for wp in range(4):
            for d in range(4):
                for h in range(2):
                    j=2*d+h; cst=32*wp+16*(j>>2)+128*(j&3)
                    k.v_fmamk_f32(v(28+h),v(24+tf),f32(cst),v(26+tf))
                for h in range(2):
                    k.v_cos_f32(v(30+h),v(28+h)); k.v_sin_f32(v(28+h),v(28+h))
                k.v_cvt_pk_bf16_f32(v(30),v(30),v(31)); k.v_cvt_pk_bf16_f32(v(28),v(28),v(29))
                k.v_accvgpr_write_b32(a((tf*4+wp)*4+d),v(30)); k.v_accvgpr_write_b32(a(32+(tf*4+wp)*4+d),v(28))
    def cacc(u,cf): return v(32+(u*4+cf)*4,4)
    def rreg(i,b,cf): return a(64+(i&1)*32+(b*4+cf)*4,4)
    lt={}
    def lread(i):
        if first:
            if i<=4: k.wait(vm=(xtok[i] if i<4 else xtok[4])); k.s_barrier()
            else: k.wait(vm=xtok[i])
        else:
            k.wait(vm=rtok[i]); k.s_barrier()
        for b in range(2):
            if first:
                for u in range(2): k.ds_read_b128(xreg(i,u,b),v(16+b),mods=f"offset:{(i&3)*4096+u*2048}")
            for cf in range(4):
                lt[i]=k.ds_read_b128(rreg(i,b,cf),v((12 if i<5 else 14)+b),mods=f"offset:{(i%5)*8192+cf*2048}")
    lread(0)
    for i in range(10):
        k.wait(lg=lt[i])
        if first and i+4<10: xload(i+4)
        if i+1<10: lread(i+1)
        if not first: k.wait(vm=xtok[i])
        if first and i==0:
            k.s_mul_i32(s(34),s(sC0),20480); k.s_lshl_b32(s(35),s(sET),11); k.s_add_u32(s(34),s(34),s(35)); k.s_add_u32(s(35),s(34),16*20480)
            for b in range(2):
                for u in range(2): k.buffer_store_dwordx4(xreg(0,u,b),v(1),s(SXA,4),s(34+u),mods=f"offen offset:{b*1024}" if b else "offen")
        for b in range(2):
            z=(i==0 and b==0)
            for u in range(2):
                x=xreg(i,u,b)
                for cf in range(4): k.mfma(cacc(u,cf),x,rreg(i,b,cf),"0" if z else cacc(u,cf))
                k.mfma(v(64+4*u,4),x,x,"0" if z else v(64+4*u,4))
                k.mfma(v(72+4*u,4),x,v(20,4),"0" if z else v(72+4*u,4))
    k.v_and_b32(v(24),48,v(0)); k.v_lshl_add_u32(v(24),v(3),2,v(24)); k.v_lshlrev_b32(v(24),2,v(24))
    for u in range(2):
        for r in range(4): t=k.ds_bpermute_b32(v(64+4*u+r),v(24),v(64+4*u+r),mods=f"offset:{4*r}")
    k.s_mov_b32(s(34),f32(1/640)); k.v_mov_b32(v(25),f32(1e-5))
    for x in range(8): k.v_mul_f32(v(72+x),s(34),v(72+x))
    k.wait(lg=t)
    for x in range(8): k.v_fma_f32(v(64+x),v(64+x),s(34),v(25))
    for x in range(8): k.v_fma_f32(v(64+x),"-"+v(72+x),v(72+x),v(64+x))
    for x in range(8): k.v_max_f32(v(64+x),v(25),v(64+x))
    for x in range(8): k.v_rsq_f32(v(64+x),v(64+x))
    CX=XST
    CX=XST+65536 if first else XST
    k.s_lshl_b32(s(34),s(sW),12); k.s_add_u32(s(34),s(34),CX); k.v_add_u32(v(26),s(34),v(1)); k.v_add_u32(v(27),CX,v(1))
    for cf in range(4):
        for u in range(2):
            for r in range(4): k.v_mul_f32(v(32+(u*4+cf)*4+r),v(64+4*u+r),v(32+(u*4+cf)*4+r))
        for u in range(2):
            for h in range(2): k.v_cvt_pk_bf16_f32(v(80+cf*4+u*2+h),v(32+(u*4+cf)*4+2*h),v(32+(u*4+cf)*4+2*h+1))
        t=k.ds_write_b128(v(26),v(80+cf*4,4),mods=f"offset:{cf*1024}")
    k.wait(lg=t); k.s_barrier()
    ct={}
    for wp in range(4):
        for cf in range(4): ct[wp]=k.ds_read_b128(v(96+(wp*4+cf)*4,4),v(27),mods=f"offset:{wp*4096+cf*1024}")
    k.s_lshl_b32(s(34),s(sW),5); k.v_add_u32(v(28),s(34),v(2)); k.v_mul_u32_u24(v(28),20480,v(28)); k.v_lshl_add_u32(v(28),v(3),4,v(28))
    k.s_mul_i32(s(34),s(sS2),1280); k.s_lshl_b32(s(35),s(sET),7); k.s_add_u32(s(34),s(34),s(35)); k.s_add_u32(s(35),s(34),16*20480)
    def o(kind,ef,tf): return v(32+kind*16+(ef*2+tf)*4,4)
    for wp in range(4):
        k.wait(lg=ct[wp])
        for ef in range(2):
            A=v(96+(wp*4+ef)*4,4); B=v(96+(wp*4+2+ef)*4,4)
            for tf in range(2):
                Tr=a((tf*4+wp)*4,4); Sn=a(32+(tf*4+wp)*4,4)
                k.mfma(o(0,ef,tf),A,Tr,o(0,ef,tf) if wp else "0")
                k.mfma(o(1,ef,tf),B,Tr,o(1,ef,tf) if wp else "0")
                k.mfma(o(2,ef,tf),A,Sn,o(2,ef,tf) if wp else "0")
            for tf in range(2):
                Sn=a(32+(tf*4+wp)*4,4)
                k.mfma(o(0,ef,tf),B,Sn,o(0,ef,tf))
    for ef in range(2):
        for tf in range(2):
            x=(ef*2+tf)*4
            for r in range(4): k.v_sub_f32(v(48+x+r),v(48+x+r),v(64+x+r))
            for r in range(4): k.v_cvt_pk_bf16_f32(v(80+x+r),v(32+x+r),v(48+x+r))
            k.buffer_store_dwordx4(v(80+x,4),v(28),s(SV,4),s(34+tf),mods=f"offen offset:{ef*64}" if ef else "offen")
    k.s_endpgm()
    if first:
        k.label(PREP)
        k.s_waitcnt(mods="lgkmcnt(0)")
        sP=32
        k.s_sub_u32(s(sP),s(2),160)
        k.v_and_b32(v(6),3,v(0))
        k.v_bfe_u32(v(7),v(0),2,2)
        k.s_cmp_ge_u32(s(sP),27); k.s_cbranch_scc1(PREP2)
        SI,SO,SC=8,12,16
        srd(k,SI,28,0,D*F*2); srd(k,SO,4,WS_W1P,WPSZ); srd(k,SC,4,WS_CS1,CSSZ)
        k.v_mul_u32_u24(v(8),F*2,v(4)); k.v_lshl_add_u32(v(8),v(5),4,v(8))
        k.s_mul_i32(s(34),s(sW),160*F*2); k.s_lshl_b32(s(35),s(sP),7); k.s_add_u32(s(34),s(34),s(35))
        k.s_mul_i32(s(36),s(sW),20480)
        for i in range(20):
            k.s_add_u32("m0",s(36),i*1024)
            t=k.buffer_load_dwordx4(v(8),s(SI,4),s(34),mods="offen lds")
            k.s_add_u32(s(34),s(34),8*F*2)
        k.v_lshl_add_u32(v(9),v(3),4,v(7)); k.v_lshlrev_b32(v(9),7,v(9)); k.v_lshl_add_u32(v(9),v(6),4,v(9))
        k.s_lshr_b32(s(34),s(sW),1); k.s_and_b32(s(35),s(sW),1)
        k.s_lshl_b32(s(36),s(34),6); k.s_lshl_b32(s(37),s(35),3); k.s_add_u32(s(36),s(36),s(37)); k.v_add_u32(v(9),s(36),v(9))
        k.v_add_u32(v(10),40960,v(9))
        k.s_lshl_b32(s(36),s(sP),1); k.s_add_u32(s(36),s(36),s(34))
        k.s_mul_i32(s(38),s(36),40960); k.s_lshl_b32(s(37),s(35),10); k.s_add_u32(s(38),s(38),s(37))
        for j in range(4): k.v_mov_b32(v(20+j),"0x3f803f80")
        k.wait(vm=t); k.s_barrier()
        tk={}
        def rd(ks):
            for hj in range(2):
                off=(64*(ks>>1)+8*(ks&1)+4*hj)*128
                tk[ks]=k.ds_read_b64_tr_b16(v(32+ks*4+2*hj,2),v(9) if ks<10 else v(10),mods=f"offset:{off if ks<10 else off-40960}")
        for ks in range(6): rd(ks)
        for ks in range(20):
            k.wait(lg=tk[ks])
            if ks+6<20: rd(ks+6)
            k.buffer_store_dwordx4(v(32+ks*4,4),v(1),s(SO,4),s(38),mods="offen offset:2048" if ks&1 else "offen")
            if ks&1: k.s_add_u32(s(38),s(38),4096)
            k.mfma(v(24,4),v(32+ks*4,4),v(20,4),v(24,4) if ks else "0")
        k.v_lshlrev_b32(v(11),5,v(3)); k.v_lshl_add_u32(v(11),v(2),28,v(11))
        k.s_lshl_b32(s(36),s(36),7); k.s_lshl_b32(s(37),s(35),4); k.s_add_u32(s(36),s(36),s(37))
        k.buffer_store_dwordx4(v(24,4),v(11),s(SC,4),s(36),mods="offen")
        k.s_endpgm()
        k.label(PREP2)
        k.s_sub_u32(s(sP),s(sP),27)
        srd(k,SI,30,0,D*F*2); srd(k,SO,4,WS_W2P,WPSZ)
        k.s_mul_i32(s(34),s(sP),81920); k.s_mul_i32(s(36),s(sW),20480); k.s_add_u32(s(34),s(34),s(36))
        for i in range(5):
            k.s_add_u32("m0",s(36),i*4096)
            for j in range(4): t=k.buffer_load_dwordx4(v(1),s(SI,4),s(34),mods=f"offen offset:{j*1024} lds" if j else "offen lds")
            k.s_add_u32(s(34),s(34),4096)
        k.s_and_b32(s(34),s(sW),1); k.s_lshr_b32(s(35),s(sW),1)
        k.v_lshl_add_u32(v(9),v(3),3,v(7)); k.v_mul_u32_u24(v(9),1280,v(9))
        k.s_mul_i32(s(36),s(34),32*1280); k.s_mul_i32(s(37),s(35),640); k.s_add_u32(s(36),s(36),s(37)); k.v_add_u32(v(9),s(36),v(9))
        k.v_lshrrev_b32(v(11),1,v(6)); k.v_lshl_add_u32(v(10),v(11),5,v(9)); k.v_and_b32(v(11),1,v(6)); k.v_lshl_add_u32(v(10),v(11),3,v(10))
        k.v_lshl_add_u32(v(9),v(6),5,v(9))
        k.s_lshl_b32(s(36),s(sP),1); k.s_add_u32(s(36),s(36),s(34)); k.s_mul_i32(s(38),s(36),5120)
        k.s_mul_i32(s(37),s(35),4*54*5120); k.s_add_u32(s(38),s(38),s(37))
        k.v_add_u32(v(12),4096,v(1))
        k.wait(vm=t); k.s_barrier()
        from emu import ct_params
        tk={}
        def rd2(z):
            x,mf=divmod(z,5); ksA,ksS,half=ct_params(x)
            for hj in range(2):
                if mf<4:
                    ks=ksA+(mf>>1); col=64*(ks>>1)+8*(ks&1)+4*(mf&1); ad=v(9)
                else:
                    col=64*(ksS>>1)+8*(ksS&1)+32*half; ad=v(10)
                tk[z]=k.ds_read_b64_tr_b16(v(32+z*4+2*hj,2),ad,mods=f"offset:{4*hj*1280+col*2}")
        for z in range(6): rd2(z)
        for z in range(20):
            k.wait(lg=tk[z])
            if z+6<20: rd2(z+6)
            mf=z%5
            k.buffer_store_dwordx4(v(32+z*4,4),v(1) if mf<4 else v(12),s(SO,4),s(38),mods=f"offen offset:{mf*1024}" if 0<mf<4 else "offen")
            if mf==4: k.s_add_u32(s(38),s(38),54*5120)
    k.label(END); k.s_endpgm()
    k.finalize()
    return k,dict(grid=NW,block=256,lds=(XST+65536+16384) if first else XST+16384,accum=256 if not first else 160)

def build(path,order=None):
    ks={}
    ks["k1a_kernel"]=gen_k1("k1a_kernel",True)
    ks["k2_kernel"]=gen_k2("k2_kernel")
    ks["k3a_kernel"]=gen_k3("k3a_kernel",False)
    ks["k1b_kernel"]=gen_k1("k1b_kernel",False)
    ks["k3b_kernel"]=gen_k3("k3b_kernel",True)
    order=order or ["k1a_kernel","k2_kernel","k3a_kernel","k1b_kernel","k2_kernel","k3b_kernel"]
    hdr=open("cdna_kernels/"+NAME+".s.ref").read().split("\n")
    out=[l for l in hdr[:12]]
    for n in order:
        p=ks[n][1]; out.append(f"; @launch kernel={n} grid=({p['grid']},1,1) block=({p['block']},1,1) lds={p['lds']}")
    out.append('.amdgcn_target "amdgcn-amd-amdhsa--gfx950"'); out.append(".text")
    for n,(k,p) in ks.items():
        out+= [f".globl {n}",".p2align 8",f".type {n},@function",f"{n}:",k.text()]
    out.append('.section .rodata,"a"')
    for n,(k,p) in ks.items():
        mv=k.maxreg("v"); ma=k.maxreg("a"); acc=p["accum"]
        assert mv<acc,(n,mv,acc)
        nv=acc+ma+1 if ma>=0 else mv+1
        print(n,"maxv",mv,"maxa",ma,"nfv",nv,"ninstr",sum(isinstance(x,Ins) for x in k.L),file=sys.stderr)
        out+=[".p2align 6",descriptor(n,nv,acc,max(k.maxreg("s")+1,16))]
    open(path,"w").write("\n".join(out)+"\n")
if __name__=="__main__":
    build(sys.argv[1] if len(sys.argv)>1 else "cdna_kernels/"+NAME+".s")
```

```python
import sys, struct
from asmlib import *
NAME="interleave_layers__spectral_fnet__dense_activation_relu__prompt"
S,D,F=2048,640,1728
XSZ=S*D*2
WS_XA=0
WS_V=WS_XA+XSZ
WS_X1=WS_V+XSZ
WS_H=WS_X1+XSZ
HSZ=128*54*1024
WS_W1P=WS_H+HSZ
WPSZ=54*40*1024
WS_W2P=WS_W1P+WPSZ
WS_CS1=WS_W2P+WPSZ
CSSZ=F*4
WS_END=WS_CS1+CSSZ
def f32(x): return "0x%08x"%struct.unpack("<I",struct.pack("<f",x))[0]
OOB=0x40000000
import os
PROFILE=int(os.environ.get("PROFILE","0"))
WS_PROF=32<<20
def stamp(k,real=False):
    if not PROFILE: return
    n=getattr(k,"nst",0); k.__dict__["nst"]=n+1
    assert n<18
    (k.s_memrealtime if real else k.s_memtime)(s(64+2*n,2))
def stamp_out(k,slot,sW,reset=None):
    if not PROFILE: return
    stamp(k); stamp(k,True)
    n=k.nst
    k.s_waitcnt(mods="vmcnt(0) lgkmcnt(0)")
    srd(k,60,4,WS_PROF+slot*256*8*128,256*8*128)
    k.s_lshl_b32(s(59),s(2),3); k.s_add_u32(s(59),s(59),s(sW)); k.s_lshl_b32(s(59),s(59),7)
    k.v_lshlrev_b32(v(1),24,v(0))
    for i in range(n):
        k.v_mov_b32(v(2),s(64+2*i)); k.buffer_store_dword(v(2),v(1),s(60,4),s(59),mods=f"offen offset:{4*i}")
    if reset is not None: k.__dict__["nst"]=reset

def srd(k,d,b,off,size):
    if off:
        k.s_add_u32(s(d),s(b),off); k.s_addc_u32(s(d+1),s(b+1),0)
    else:
        k.s_mov_b32(s(d),s(b)); k.s_mov_b32(s(d+1),s(b+1))
    k.s_mov_b32(s(d+2),size); k.s_mov_b32(s(d+3),"0x20000")

def cls_of(k,dst,snf,sp0,t0,t1):
    k.s_lshr_b32(s(t0),s(snf),1); k.s_add_u32(s(t0),s(t0),s(sp0))
    k.s_sub_u32(s(t1),128,s(t0))
    k.s_cmp_eq_u32(s(t0),0); k.s_cselect_b32(s(t1),64,s(t1))
    k.s_bitcmp1_b32(s(snf),0); k.s_cselect_b32(s(dst),s(t1),s(t0))

MAP=int(os.environ.get("MAP","0"))
def rbct(k,srb,sct,t):
    if MAP==1:
        k.s_lshr_b32(s(srb),s(2),3); k.s_and_b32(s(sct),s(2),7); return
    if MAP==2:
        k.s_and_b32(s(srb),s(2),3); k.s_lshl_b32(s(srb),s(srb),3)
        k.s_lshr_b32(s(t),s(2),3); k.s_and_b32(s(sct),s(t),7); k.s_add_u32(s(srb),s(srb),s(sct))
        k.s_lshr_b32(s(t),s(t),3); k.s_and_b32(s(sct),s(2),4); k.s_add_u32(s(sct),s(sct),s(t)); return
    k.s_and_b32(s(srb),s(2),7); k.s_lshl_b32(s(srb),s(srb),2)
    k.s_lshr_b32(s(t),s(2),3); k.s_lshr_b32(s(sct),s(t),2)
    k.s_and_b32(s(t),s(t),3); k.s_add_u32(s(srb),s(srb),s(t))

def gen_k3(name,final):
    k=Kern(name); END=k.newlabel("end")
    k.s_cmp_ge_u32(s(2),256); k.s_cbranch_scc1(END)
    stamp(k,True); stamp(k)
    k.s_load_dwordx2(s(4,2),s(0,2),80)
    if final: k.s_load_dwordx2(s(6,2),s(0,2),64)
    sW,sRB,sCT,sP0=3,24,25,26
    k.v_lshrrev_b32(v(2),6,v(0)); k.v_and_b32(v(0),63,v(0)); k.v_readfirstlane_b32(s(sW),v(2))
    k.v_lshlrev_b32(v(1),4,v(0))
    rbct(k,sRB,sCT,27)
    k.s_lshl_b32(s(sP0),s(sRB),1)
    sC=28
    for nu in range(4):
        k.s_add_u32(s(32),s(sW),nu); k.s_and_b32(s(32),s(32),3)
        cls_of(k,sC+nu,32,sP0,33,34)
        k.s_mul_i32(s(33),s(sC+nu),54*1024); k.v_add_u32(v(2+nu),s(33),v(1))
        if nu:
            k.s_mul_i32(s(33),s(32),15360); k.s_add_u32(s(33),s(33),(nu-1)*5120); k.v_add_u32(v(7+nu),s(33),v(1))
        else:
            k.s_mul_i32(s(33),s(32),15360); k.v_add_u32(v(11),s(33),v(1))
    k.s_mul_i32(s(33),s(sCT),54*5120); k.v_add_u32(v(6),s(33),v(1)); k.v_add_u32(v(7),4096,v(6))
    sKA,sKS,sHF=36,37,38
    k.s_mul_i32(s(33),s(sCT),5); k.s_lshr_b32(s(33),s(33),1)
    k.s_and_b32(s(sHF),s(sCT),1)
    k.s_add_u32(s(sKA),s(33),s(sHF))
    k.s_add_u32(s(34),s(33),2); k.s_cmp_eq_u32(s(sHF),0); k.s_cselect_b32(s(sKS),s(34),s(33))
    k.v_and_b32(v(15),15,v(0))
    k.v_lshrrev_b32(v(46),4,v(0))
    k.s_mul_i32(s(33),s(sC),20)
    k.s_add_u32(s(34),s(33),s(sKA)); k.s_lshl_b32(s(34),s(34),10); k.v_add_u32(v(12),s(34),v(1))
    k.s_add_u32(s(34),s(33),s(sKS)); k.s_lshl_b32(s(34),s(34),10)
    k.s_lshl_b32(s(35),s(sHF),9); k.s_add_u32(s(34),s(34),s(35))
    k.v_lshrrev_b32(v(47),1,v(46)); k.v_lshlrev_b32(v(47),8,v(47))
    k.v_lshl_add_u32(v(13),v(15),4,v(47))
    k.v_and_b32(v(47),1,v(46)); k.v_lshl_add_u32(v(13),v(47),3,v(13))
    k.v_add_u32(v(13),s(34),v(13))
    k.s_waitcnt(mods="lgkmcnt(0)")
    stamp(k)
    SH,SWp,SX,SO=8,12,16,20
    srd(k,SH,4,WS_H,HSZ); srd(k,SWp,4,WS_W2P,WPSZ); srd(k,SX,4,WS_X1,XSZ)
    if final: srd(k,SO,6,0,XSZ)
    else: srd(k,SO,4,WS_XA,XSZ)
    RES=36
    k.buffer_load_dwordx4(v(RES,4),v(12),s(SX,4),0,mods="offen")
    k.buffer_load_dwordx4(v(RES+4,4),v(12),s(SX,4),0,mods="offen offset:1024")
    tres=k.buffer_load_dwordx2(v(RES+8,2),v(13),s(SX,4),0,mods="offen")
    NB=8; PD=6
    def buf(b,f):
        return v(48+b*36+f*4,4) if b<5 else a(60+(b-5)*36+f*4,4)
    sHK=40
    k.s_and_b32(s(33),s(sRB),3); k.s_mul_i32(s(33),s(33),2); k.s_add_u32(s(33),s(33),s(sCT)); k.s_and_b32(s(33),s(33),7)
    k.s_mul_i32(s(33),s(33),7); k.s_add_u32(s(sHK),s(33),s(sW))
    tok={}
    def issue(i):
        if i>0:
            k.s_add_u32(s(sHK),s(sHK),4); k.s_sub_u32(s(41),s(sHK),54)
            k.s_cmp_ge_u32(s(sHK),54); k.s_cselect_b32(s(sHK),s(41),s(sHK))
        k.s_lshl_b32(s(42),s(sHK),10); k.s_mul_i32(s(43),s(sHK),5120)
        if i==13:
            k.s_cmp_ge_u32(s(sW),2); k.s_cselect_b32(s(42),OOB,s(42)); k.s_cselect_b32(s(43),OOB,s(43))
        b=i%NB
        for nu in range(4):
            k.buffer_load_dwordx4(buf(b,5+nu),v(2+nu),s(SH,4),s(42),mods="offen")
            k.buffer_load_dwordx4(buf(b,nu),v(6),s(SWp,4),s(43),mods=f"offen offset:{nu*1024}" if nu else "offen")
        tok[i]=k.buffer_load_dwordx4(buf(b,4),v(7),s(SWp,4),s(43),mods="offen")
    for i in range(PD): issue(i)
    stamp(k)
    if final:
        k.v_lshlrev_b32(v(47),7,v(15)); k.v_add_u32(v(47),s(sC),v(47)); k.s_movk_i32(s(33),1280); k.v_mul_lo_u32(v(47),v(47),s(33))
        def colb(dst,sks,add):
            k.s_add_u32(s(35),s(sks),add)
            k.s_lshr_b32(s(dst),s(35),1); k.s_lshl_b32(s(dst),s(dst),7)
            k.s_and_b32(s(35),s(35),1); k.s_lshl_b32(s(35),s(35),4); k.s_add_u32(s(dst),s(dst),s(35))
        colb(44,sKA,0); colb(45,sKA,1); colb(46,sKS,0)
        k.s_lshl_b32(s(35),s(sHF),6); k.s_add_u32(s(46),s(46),s(35))
        k.v_lshl_add_u32(v(14),v(46),5,v(47))
        k.v_lshrrev_b32(v(15),1,v(46)); k.v_lshl_add_u32(v(47),v(15),5,v(47))
        k.v_and_b32(v(15),1,v(46)); k.v_lshl_add_u32(v(15),v(15),3,v(47))
    def acc(nu,mf): return v(16+mf*4,4) if nu==0 else a((nu-1)*20+mf*4,4)
    for r in range(60): k.v_accvgpr_write_b32(a(r),0)
    k.wait(vm=tres)
    stamp(k)
    for d in range(10):
        k.v_lshlrev_b32(v(16+2*d),16,v(RES+d)); k.v_and_b32(v(16+2*d+1),"0xffff0000",v(RES+d))
    for i in range(14):
        k.wait(vm=tok[i])
        if i in(0,3,6,9,13): stamp(k)
        if i+PD<14: issue(i+PD)
        b=i%NB
        for nu in (1,2,3,0):
            for mf in range(5): k.mfma(acc(nu,mf),buf(b,mf),buf(b,5+nu),acc(nu,mf))
    for nu in (1,2,3):
        for mf in range(5): t=k.ds_write_b128(v(7+nu),acc(nu,mf),mods=f"offset:{mf*1024}")
    stamp(k)
    k.wait(lg=t); k.s_barrier()
    stamp(k)
    rt={}
    for mf in range(5):
        for sl in range(3): rt[mf]=k.ds_read_b128(v(48+(mf*3+sl)*4,4),v(11),mods=f"offset:{sl*5120+mf*1024}")
    for mf in range(5):
        k.wait(lg=rt[mf])
        b0=48+mf*12
        for h in range(2):
            k.v_pk_add_f32(v(b0+2*h,2),v(b0+2*h,2),v(b0+4+2*h,2))
            k.v_pk_add_f32(v(16+mf*4+2*h,2),v(16+mf*4+2*h,2),v(b0+8+2*h,2))
        for h in range(2):
            k.v_pk_add_f32(v(16+mf*4+2*h,2),v(16+mf*4+2*h,2),v(b0+2*h,2))
        for h in range(2):
            k.v_cvt_pk_bf16_f32(v(RES+mf*2+h),v(16+mf*4+2*h),v(16+mf*4+2*h+1))
        if mf==1:
            if final: k.buffer_store_dwordx4(v(RES,4),v(14),s(SO,4),s(44),mods="offen")
            else: k.buffer_store_dwordx4(v(RES,4),v(12),s(SO,4),0,mods="offen")
        if mf==3:
            if final: k.buffer_store_dwordx4(v(RES+4,4),v(14),s(SO,4),s(45),mods="offen")
            else: k.buffer_store_dwordx4(v(RES+4,4),v(12),s(SO,4),0,mods="offen offset:1024")
        if mf==4:
            if final: k.buffer_store_dwordx2(v(RES+8,2),v(15),s(SO,4),s(46),mods="offen")
            else: k.buffer_store_dwordx2(v(RES+8,2),v(13),s(SO,4),0,mods="offen")
    stamp(k)
    stamp_out(k,4 if final else 2,sW)
    k.label(END); k.s_endpgm()
    k.finalize()
    return k,dict(grid=256,block=256,lds=61440,accum=256)

def gen_k2(name):
    k=Kern(name); END=k.newlabel("end"); HELP=k.newlabel("help"); SKIP0=k.newlabel("skipA"); SKIP1=k.newlabel("skipB"); NOW=k.newlabel("now"); NOW2=k.newlabel("now2")
    STATS=81920; DUMMY=STATS+512
    k.s_cmp_ge_u32(s(2),256); k.s_cbranch_scc1(END)
    stamp(k,True); stamp(k)
    k.s_load_dwordx2(s(4,2),s(0,2),80)
    sW,sRB,sCT,sP0,sSG,sHI,sCS,sSM,sCM=3,28,29,30,31,32,33,34,35
    k.v_lshrrev_b32(v(2),6,v(0)); k.v_and_b32(v(0),63,v(0)); k.v_readfirstlane_b32(s(sW),v(2))
    k.v_lshlrev_b32(v(1),4,v(0))
    k.v_and_b32(v(2),15,v(0))
    k.v_lshrrev_b32(v(3),4,v(0))
    rbct(k,sRB,sCT,36)
    k.s_lshl_b32(s(sP0),s(sRB),1)
    k.s_and_b32(s(sSG),s(sW),3); k.s_lshr_b32(s(sHI),s(sW),2)
    cls_of(k,sCS,sSG,sP0,36,37)
    k.s_xor_b32(s(sSM),s(sSG),1)
    k.s_lshr_b32(s(36),s(sSG),1); k.s_or_b32(s(36),s(36),s(sRB)); k.s_cmp_eq_u32(s(36),0); k.s_cselect_b32(s(sSM),s(sSG),s(sSM))
    cls_of(k,sCM,sSM,sP0,36,37)
    k.v_mul_u32_u24(v(4),5120,v(3)); k.v_lshl_add_u32(v(4),v(2),4,v(4))
    k.v_xor_b32(v(5),0x300,v(1))
    sQ=38
    k.s_mov_b32(s(sQ),2); k.s_mul_i32(s(sQ+1),s(sHI),3); k.s_add_u32(s(sQ+2),s(sQ+1),1)
    k.v_lshrrev_b32(v(7),2,v(2))
    k.v_add_u32(v(8),s(sQ+1),v(7))
    k.v_cmp_eq_u32("vcc",0,v(7)); k.v_cndmask_b32(v(8),v(8),3,"vcc")
    k.v_cmp_le_u32("vcc",5,v(8)); k.v_cndmask_b32(v(8),v(8),0,"vcc")
    k.v_and_b32(v(7),3,v(2)); k.v_lshl_add_u32(v(7),v(3),2,v(7)); k.v_mul_u32_u24(v(7),1280,v(7))
    k.v_lshl_add_u32(v(6),v(8),8,v(7))
    k.s_waitcnt(mods="lgkmcnt(0)")
    stamp(k)
    SV,SX,SWp,SH,SX1,SCS=8,12,16,20,24,44
    srd(k,SV,4,WS_V,XSZ); srd(k,SX,4,WS_XA,XSZ); srd(k,SWp,4,WS_W1P,WPSZ)
    sVB,sXD,sXM=48,49,50
    k.s_mul_i32(s(sVB),s(sCS),20480); k.s_mul_i32(s(sXM),s(sCM),20480); k.s_add_u32(s(sXM),s(sXM),18*1024)
    UB=[24,56,88]
    BND=9
    utok={}
    def uload(u):
        b=UB[u]
        k.s_lshl_b32(s(36),s(sQ+u),8); k.s_add_u32(s(36),s(36),s(sVB))
        k.s_lshl_b32(s(37),s(sQ+u),11); k.s_sub_u32(s(41),s(sXM),s(37)); k.s_add_u32(s(37),s(37),s(sVB))
        for j in range(4): k.buffer_load_dwordx4(v(b+4*j,4),v(4),s(SV,4),s(36),mods=f"offen offset:{j*1280}" if j else "offen")
        k.buffer_load_dwordx4(v(b+16,4),v(1),s(SX,4),s(37),mods="offen")
        k.buffer_load_dwordx4(v(b+20,4),v(1),s(SX,4),s(37),mods="offen offset:1024")
        k.buffer_load_dwordx4(v(b+24,4),v(5),s(SX,4),s(41),mods="offen")
        utok[u]=k.buffer_load_dwordx4(v(b+28,4),v(5),s(SX,4),s(41),mods="offen offset:1024")
    k.buffer_load_dword(v(BND),v(6),s(SV,4),s(sVB),mods="offen")
    k.s_cmp_lg_u32(s(sHI),0); k.s_cbranch_scc1(SKIP0)
    uload(0)
    k.label(SKIP0)
    uload(1); uload(2)
    sU,sWB,sKS=51,52,53
    k.s_mul_i32(s(sU),s(sCT),7); k.s_cmp_eq_u32(s(sCT),7); k.s_cselect_b32(s(sU),48,s(sU)); k.s_add_u32(s(sU),s(sU),s(sW))
    k.s_mul_i32(s(sWB),s(sU),40960)
    k.s_cmp_ge_u32(s(sCT),6); k.s_cselect_b32(s(36),6,7); k.s_cmp_ge_u32(s(sW),s(36)); k.s_cselect_b32(s(54),1,0)
    k.s_cselect_b32(s(sWB),OOB,s(sWB))
    sROT=55
    k.s_and_b32(s(sROT),s(sRB),3); k.s_mul_i32(s(sROT),s(sROT),5)
    k.s_mov_b32(s(sKS),s(sROT))
    def wreg(i,mf): return a(i*8+mf*4,4) if i<12 else v(56+(i-12)*8+mf*4,4)
    wtok={}
    def wload(i):
        if i>0:
            k.s_add_u32(s(sKS),s(sKS),1); k.s_cmp_eq_u32(s(sKS),20); k.s_cselect_b32(s(sKS),0,s(sKS))
        k.s_lshl_b32(s(36),s(sKS),11); k.s_add_u32(s(36),s(36),s(sWB))
        k.buffer_load_dwordx4(wreg(i,0),v(1),s(SWp,4),s(36),mods="offen")
        wtok[i]=k.buffer_load_dwordx4(wreg(i,1),v(1),s(SWp,4),s(36),mods="offen offset:1024")
    for i in range(12): wload(i)
    stamp(k)
    srd(k,SH,4,WS_H,HSZ); srd(k,SX1,4,WS_X1,XSZ); srd(k,SCS,4,WS_CS1,CSSZ)
    k.v_cvt_f32_u32(v(10),v(2)); k.v_mul_f32(v(10),f32(1/16),v(10))
    k.s_cmp_eq_u32(s(sCS),0); k.s_cselect_b32(s(36),f32(1.0),f32(15/16))
    k.v_sub_f32(v(11),s(36),v(10))
    k.v_lshlrev_b32(v(12),2,v(3)); k.v_cvt_f32_u32(v(12),v(12))
    for jj in range(4):
        k.v_add_f32(v(13),f32(jj) if jj==3 else ("0" if jj==0 else f"{jj}.0"),v(12))
        for mi in range(2):
            k.v_mul_f32(v(14),v(13),v(10+mi))
            k.v_cos_f32(v(15),v(14)); k.v_sin_f32(v(14),v(14))
            k.v_cvt_pk_bf16_f32(v(16+4*mi+jj),v(15),v(14))
    k.v_add_u32(v(10),s(sHI),v(2)); k.v_cmp_eq_u32("vcc",0,v(10)); k.v_cndmask_b32(v(10),-1,0,"vcc")
    k.s_lshl_b32(s(36),s(sSG),10); k.v_add_u32(v(11),s(36),v(1))
    k.s_lshl_b32(s(36),s(sSM),10); k.s_add_u32(s(36),s(36),18*4096); k.v_add_u32(v(12),s(36),v(5))
    F4=120; CD=124; CM=140
    def uproc(u):
        b=UB[u]
        k.wait(vm=utok[u])
        for j in range(4):
            k.v_mov_b32_dpp(v(F4+j),v(BND),mods=f"row_shr:{15-4*u-j} row_mask:0xf bank_mask:0xf")
        for j in range(4):
            k.v_mov_b32_dpp(v(F4+j),v(b+4*j),mods="row_shl:1 row_mask:0xf bank_mask:0xf")
        for x in range(4):
            for y in range(x+1,4): k.v_swap_b32(v(b+4*x+y),v(b+4*y+x))
        if u==1:
            for j in range(4): k.v_and_b32(v(b+j),v(10),v(b+j))
        def unpack(dst,src,hi):
            if hi: k.v_and_b32(v(dst),"0xffff0000",v(src))
            else: k.v_lshlrev_b32(v(dst),16,v(src))
        for i in range(4):
            for r in range(4):
                dl=4*r+i; unpack(CD+4*i+r,b+16+(dl>>1),dl&1)
            k.mfma(v(CD+4*i,4),v(b+4*i,4),v(16,4),v(CD+4*i,4))
        for i in range(1,5):
            for r in range(4):
                o=16-(4*r+i); unpack(CM+4*(i-1)+r,b+24+(o>>1),o&1)
            k.mfma(v(CM+4*(i-1),4),v(b+4*i,4) if i<4 else v(F4,4),v(20,4),v(CM+4*(i-1),4))
        k.s_lshl_b32(s(36),s(sQ+u),13)
        k.v_add_u32(v(13),s(36),v(11)); k.v_subrev_u32(v(14),s(36),v(12))
        for d in range(8):
            lo,hi=2*d,2*d+1
            k.v_cvt_pk_bf16_f32(v(b+16+d),v(CD+4*(lo&3)+(lo>>2)),v(CD+4*(hi&3)+(hi>>2)))
            if d==3: k.ds_write_b128(v(13),v(b+16,4))
            if d==7: k.ds_write_b128(v(13),v(b+20,4),mods="offset:4096")
        def mreg(o):
            dl=16-o; i=((dl-1)&3)+1; r=(dl-i)>>2; return CM+4*(i-1)+r
        for d in range(8):
            k.v_cvt_pk_bf16_f32(v(b+24+d),v(mreg(2*d)),v(mreg(2*d+1)))
            if d==3: k.ds_write_b128(v(14),v(b+24,4))
            if d==7: t=k.ds_write_b128(v(14),v(b+28,4),mods="offset:4096")
        return t
    stamp(k)
    k.s_cmp_lg_u32(s(sHI),0); k.s_cbranch_scc1(SKIP1)
    uproc(0)
    k.label(SKIP1)
    stamp(k)
    uproc(1); stamp(k); t=uproc(2)
    k.wait(lg=t)
    stamp(k)
    nsth=getattr(k,"nst",0)
    k.s_cmp_eq_u32(s(sW),7); k.s_cbranch_scc1(HELP)
    for i in range(12,20): wload(i)
    k.s_lshl_b32(s(36),s(sU),7); k.v_lshlrev_b32(v(13),5,v(3))
    k.buffer_load_dwordx4(v(16,4),v(13),s(SCS,4),s(36),mods="offen")
    cstok=k.buffer_load_dwordx4(v(20,4),v(13),s(SCS,4),s(36),mods="offen offset:16")
    k.s_barrier()
    stamp(k)
    ACC=120
    def acc(nf,mf): return v(ACC+(nf*2+mf)*4,4)
    XB=[24,40]
    k.s_mov_b32(s(sKS),s(sROT))
    xt={}
    def xread(i):
        if i>0:
            k.s_add_u32(s(sKS),s(sKS),1); k.s_cmp_eq_u32(s(sKS),20); k.s_cselect_b32(s(sKS),0,s(sKS))
        k.s_lshl_b32(s(36),s(sKS),12); k.v_add_u32(v(13+(i&1)),s(36),v(1))
        for nf in range(4): xt[i]=k.ds_read_b128(v(XB[i&1]+4*nf,4),v(13+(i&1)),mods=f"offset:{nf*1024}")
    xread(0)
    for i in range(20):
        if i+1<20: xread(i+1)
        k.wait(vm=wtok[i],lg=xt[i])
        if i in(0,6,12,19): stamp(k)
        for nf in range(4):
            for mf in range(2):
                k.mfma(acc(nf,mf),wreg(i,mf),v(XB[i&1]+4*nf,4),acc(nf,mf) if i else "0")
    for nf in range(4):
        k.s_mov_b32(s(36),nf); cls_of(k,56+nf,36,sP0,37,41)
        k.s_mul_i32(s(56+nf),s(56+nf),54); k.s_add_u32(s(56+nf),s(56+nf),s(sU)); k.s_lshl_b32(s(56+nf),s(56+nf),10)
        k.s_cmp_lg_u32(s(54),0); k.s_cselect_b32(s(56+nf),OOB,s(56+nf))
    k.v_lshlrev_b32(v(13),3,v(2))
    stamp(k)
    k.s_barrier()
    stamp(k)
    st={}
    for nf in range(4): st[nf]=k.ds_read_b64(v(24+2*nf,2),v(13),mods=f"offset:{STATS-65536+nf*128}") if False else None
    k.v_add_u32(v(13),STATS,v(13))
    for nf in range(4): st[nf]=k.ds_read_b64(v(24+2*nf,2),v(13),mods=f"offset:{nf*128}")
    k.wait(vm=cstok)
    for nf in range(4):
        k.wait(lg=st[nf])
        for mf in range(2):
            for r in range(4):
                x=ACC+(nf*2+mf)*4+r
                k.v_mul_f32(v(x),v(24+2*nf),v(x))
            for r in range(4):
                x=ACC+(nf*2+mf)*4+r
                k.v_fma_f32(v(x),v(25+2*nf),v(16+mf*4+r),v(x))
            for r in range(4):
                x=ACC+(nf*2+mf)*4+r
                k.v_max_f32(v(x),0,v(x))
            for h in range(2):
                x=ACC+(nf*2+mf)*4+2*h
                k.v_cvt_pk_bf16_f32(v(40+nf*4+mf*2+h),v(x),v(x+1))
        k.buffer_store_dwordx4(v(40+nf*4,4),v(1),s(SH,4),s(56+nf),mods="offen")
    stamp(k)
    stamp_out(k,1,sW,reset=nsth)
    k.s_endpgm()
    k.label(HELP)
    for j in range(4): k.v_mov_b32(v(16+j),"0x3f803f80")
    k.s_barrier()
    k.s_mul_i32(s(42),s(sCT),10)
    k.s_lshl_b32(s(36),s(42),10); k.v_add_u32(v(13),s(36),v(1))
    tk={}
    for j in range(10): tk[j]=k.ds_read_b128(v(56+4*j,4),v(13),mods=f"offset:{j*1024}")
    for j in range(10):
        k.s_add_u32(s(43),s(42),j); k.s_and_b32(s(36),s(43),3); cls_of(k,56,36,sP0,37,41)
        k.s_mul_i32(s(56),s(56),20); k.s_lshr_b32(s(43),s(43),2); k.s_add_u32(s(56),s(56),s(43)); k.s_lshl_b32(s(56),s(56),10)
        k.wait(lg=tk[j])
        k.buffer_store_dwordx4(v(56+4*j,4),v(1),s(SX1,4),s(56),mods="offen")
    stamp(k)
    k.v_add_u32(v(14),40960,v(1))
    def hread(i):
        for nf in range(4): xt[i]=k.ds_read_b128(v(XB[i&1]+4*nf,4),v(1) if i<10 else v(14),mods=f"offset:{(i%10)*4096+nf*1024}")
    hread(0)
    for i in range(20):
        if i+1<20: hread(i+1)
        k.wait(lg=xt[i])
        for nf in range(4):
            x=v(XB[i&1]+4*nf,4)
            k.mfma(acc(nf,0),x,x,acc(nf,0) if i else "0")
            k.mfma(acc(nf,1),v(16,4),x,acc(nf,1) if i else "0")
    k.v_and_b32(v(13),3,v(2))
    k.v_cmp_eq_u32(s(56,2),1,v(13)); k.v_cmp_eq_u32(s(58,2),2,v(13)); k.v_cmp_eq_u32(s(60,2),3,v(13))
    k.v_lshrrev_b32(v(13),2,v(2)); k.v_cmp_eq_u32("vcc",v(13),v(3))
    k.v_lshlrev_b32(v(13),3,v(2)); k.v_add_u32(v(13),STATS,v(13))
    k.v_lshlrev_b32(v(14),3,v(0)); k.v_add_u32(v(14),DUMMY,v(14))
    k.v_cndmask_b32(v(13),v(14),v(13),"vcc")
    k.s_mov_b32(s(36),f32(1/640)); k.v_mov_b32(v(15),f32(1e-5))
    for nf in range(4):
        g0=ACC+nf*8; sm=g0+4
        k.v_cndmask_b32(v(g0),v(g0),v(g0+1),s(56,2)); k.v_cndmask_b32(v(g0),v(g0),v(g0+2),s(58,2)); k.v_cndmask_b32(v(g0),v(g0),v(g0+3),s(60,2))
        k.v_mul_f32(v(sm),s(36),v(sm))
        k.v_fma_f32(v(g0),v(g0),s(36),v(15))
        k.v_fma_f32(v(g0),"-"+v(sm),v(sm),v(g0))
        k.v_max_f32(v(g0),v(15),v(g0))
        k.v_rsq_f32(v(g0),v(g0))
        k.v_mul_f32(v(g0+1),"-"+v(sm),v(g0)) if False else k.i("v_mul_f32_e64",v(g0+1),"-"+v(sm),v(g0))
        t=k.ds_write_b64(v(13),v(g0,2),mods=f"offset:{nf*128}")
    stamp(k)
    k.wait(lg=t); k.s_barrier()
    stamp_out(k,1,sW)
    k.label(END); k.s_endpgm()
    k.finalize()
    return k,dict(grid=256,block=512,lds=STATS+512+512+512,accum=160)

def gen_k1(name,first):
    k=Kern(name); END=k.newlabel("end"); PREP=k.newlabel("prep"); PREP2=k.newlabel("prep2")
    NW=160+54 if first else 160
    k.s_cmp_ge_u32(s(2),NW); k.s_cbranch_scc1(END)
    stamp(k,True); stamp(k)
    k.s_load_dwordx2(s(4,2),s(0,2),80)
    k.s_load_dwordx4(s(24,4),s(0,2),24)
    if first:
        k.s_load_dwordx2(s(6,2),s(0,2),0)
        k.s_load_dwordx4(s(28,4),s(0,2),48)
    sW,sS2,sET=3,32,33
    k.v_lshrrev_b32(v(2),6,v(0)); k.v_and_b32(v(0),63,v(0)); k.v_readfirstlane_b32(s(sW),v(2))
    k.v_lshlrev_b32(v(1),4,v(0)); k.v_and_b32(v(2),15,v(0)); k.v_lshrrev_b32(v(3),4,v(0))
    k.v_lshrrev_b32(v(4),3,v(0))
    k.v_and_b32(v(5),7,v(0))
    if first:
        k.s_cmp_ge_u32(s(2),160); k.s_cbranch_scc1(PREP)
    k.s_and_b32(s(sS2),s(2),7); k.s_lshl_b32(s(sS2),s(sS2),1); k.s_lshr_b32(s(34),s(2),3)
    k.s_lshr_b32(s(sET),s(34),1); k.s_and_b32(s(34),s(34),1); k.s_add_u32(s(sS2),s(sS2),s(34))
    def swz(dst,src,t):
        k.v_bfe_u32(v(t),v(src),1,1); k.v_and_or_b32(v(dst),v(src),4,v(t))
    swz(6,4,7); k.v_xor_b32(v(6),v(6),v(5)); k.v_lshlrev_b32(v(6),4,v(6))
    k.s_lshl_b32(s(34),s(sET),5); k.s_and_b32(s(35),s(sW),1); k.s_lshl_b32(s(35),s(35),4); k.s_add_u32(s(34),s(34),s(35))
    k.v_add_u32(v(8),s(34),v(4)); k.v_add_u32(v(9),8,v(8))
    k.v_mov_b32(v(7),320); k.v_cmp_eq_u32("vcc",0,v(8)); k.v_cndmask_b32(v(8),v(8),v(7),"vcc")
    k.v_mul_u32_u24(v(8),1280,v(8)); k.v_mul_u32_u24(v(9),1280,v(9)); k.v_add_u32(v(8),v(8),v(6)); k.v_add_u32(v(9),v(9),v(6))
    if first:
        k.s_mov_b32(s(34),128*1280); k.v_mul_lo_u32(v(10),v(4),s(34)); k.v_add_u32(v(10),v(10),v(6))
    k.s_waitcnt(mods="lgkmcnt(0)")
    stamp(k)
    SR,SX,SV,SXA=8,12,16,20
    k.s_cmp_ge_u32(s(sW),2); k.s_cselect_b32(s(SR),s(26),s(24)); k.s_cselect_b32(s(SR+1),s(27),s(25))
    k.s_mov_b32(s(SR+2),D*D*2); k.s_mov_b32(s(SR+3),"0x20000")
    if first: srd(k,SX,6,0,XSZ); srd(k,SXA,4,WS_XA,XSZ)
    else: srd(k,SX,4,WS_XA,XSZ)
    srd(k,SV,4,WS_V,XSZ)
    XST=81920
    sC0=36
    k.s_lshl_b32(s(sC0),s(sW),5); k.s_add_u32(s(sC0),s(sC0),s(sS2))
    sQR,sQX,sM,sXB,sLX=37,38,39,40,41
    k.s_mov_b32(s(sQR),s(sET)); k.s_mov_b32(s(sQX),s(sET))
    k.s_lshl_b32(s(sM),s(sW),11)
    if first:
        k.s_mul_i32(s(sXB),s(sC0),1280)
        k.s_lshl_b32(s(sLX),s(sW),14); k.s_add_u32(s(sLX),s(sLX),XST)
    else:
        k.s_mul_i32(s(sXB),s(sC0),20480)
    rtok={}; xtok={}
    def adv(r):
        k.s_add_u32(s(r),s(r),1); k.s_cmp_eq_u32(s(r),10); k.s_cselect_b32(s(r),0,s(r))
    def rload(i):
        if i: adv(sQR)
        k.s_lshl_b32(s(34),s(sQR),7)
        for rg in range(2):
            k.s_add_u32("m0",s(sM),i*8192+rg*1024)
            rtok[i]=k.buffer_load_dwordx4(v(8+rg),s(SR,4),s(34),mods="offen lds")
    XR=96
    def xreg(i,u,b): return v(XR+i*16+(b*2+u)*4,4) if not first else v(XR+(i&1)*16+(b*2+u)*4,4)
    def xload(i):
        if i: adv(sQX)
        if first:
            k.s_lshl_b32(s(34),s(sQX),7); k.s_add_u32(s(34),s(34),s(sXB))
            for u in range(2):
                for h in range(2):
                    k.s_add_u32("m0",s(sLX),(i&3)*4096+u*2048+h*1024)
                    k.s_add_u32(s(35),s(34),(16*u+1024*h)*1280)
                    xtok[i]=k.buffer_load_dwordx4(v(10),s(SX,4),s(35),mods="offen lds")
        else:
            k.s_lshl_b32(s(34),s(sQX),11); k.s_add_u32(s(34),s(34),s(sXB)); k.s_add_u32(s(35),s(34),16*20480)
            for b in range(2):
                for u in range(2):
                    xtok[i]=k.buffer_load_dwordx4(xreg(i,u,b),v(1),s(SX,4),s(34+u),mods=f"offen offset:{b*1024}" if b else "offen")
    if first:
        for i in range(4): rload(i); xload(i)
        for i in range(4,10): rload(i)
    else:
        for i in range(10): rload(i); xload(i)
    stamp(k)
    k.v_and_b32(v(11),7,v(2)); swz(12,11,7); k.v_lshlrev_b32(v(13),1,v(3)); k.v_xor_b32(v(12),v(12),v(13)); k.v_lshlrev_b32(v(12),4,v(12))
    k.v_lshl_add_u32(v(12),v(11),7,v(12)); k.v_lshrrev_b32(v(11),3,v(2)); k.v_lshl_add_u32(v(12),v(11),10,v(12))
    k.v_xor_b32(v(13),16,v(12))
    k.v_add_u32(v(14),40960,v(12)); k.v_add_u32(v(15),40960,v(13))
    if first:
        k.v_add_u32(v(16),s(sLX),v(12)); k.v_add_u32(v(17),s(sLX),v(13))
    for j in range(4): k.v_mov_b32(v(20+j),"0x3f803f80")
    k.s_lshl_b32(s(34),s(sW),5); k.v_add_u32(v(24),s(34),v(2)); k.v_cvt_f32_u32(v(24),v(24)); k.v_mul_f32(v(24),f32(1/2048),v(24))
    k.v_add_f32(v(25),f32(16/2048),v(24))
    k.v_lshlrev_b32(v(26),9,v(3)); k.v_add_u32(v(26),s(sS2),v(26)); k.v_cvt_f32_u32(v(26),v(26))
    k.v_mul_f32(v(27),v(26),v(25)); k.v_mul_f32(v(26),v(26),v(24))
    for tf in range(2):
        for wp in range(4):
            for d in range(4):
                for h in range(2):
                    j=2*d+h; cst=32*wp+16*(j>>2)+128*(j&3)
                    k.v_fmamk_f32(v(28+h),v(24+tf),f32(cst),v(26+tf))
                for h in range(2):
                    k.v_cos_f32(v(30+h),v(28+h)); k.v_sin_f32(v(28+h),v(28+h))
                k.v_cvt_pk_bf16_f32(v(30),v(30),v(31)); k.v_cvt_pk_bf16_f32(v(28),v(28),v(29))
                k.v_accvgpr_write_b32(a((tf*4+wp)*4+d),v(30)); k.v_accvgpr_write_b32(a(32+(tf*4+wp)*4+d),v(28))
    def cacc(u,cf): return v(32+(u*4+cf)*4,4)
    def rreg(i,b,cf): return a(64+(i&1)*32+(b*4+cf)*4,4)
    lt={}
    def lread(i):
        if first:
            if i<=4: k.wait(vm=(xtok[i] if i<4 else xtok[4])); k.s_barrier()
            else: k.wait(vm=xtok[i])
        else:
            k.wait(vm=rtok[i]); k.s_barrier()
        for b in range(2):
            if first:
                for u in range(2): k.ds_read_b128(xreg(i,u,b),v(16+b),mods=f"offset:{(i&3)*4096+u*2048}")
            for cf in range(4):
                lt[i]=k.ds_read_b128(rreg(i,b,cf),v((12 if i<5 else 14)+b),mods=f"offset:{(i%5)*8192+cf*2048}")
    stamp(k)
    lread(0)
    for i in range(10):
        k.wait(lg=lt[i])
        if i in(0,2,5,9): stamp(k)
        if first and i+4<10: xload(i+4)
        if i+1<10: lread(i+1)
        if not first: k.wait(vm=xtok[i])
        if first and i==0:
            k.s_mul_i32(s(34),s(sC0),20480); k.s_lshl_b32(s(35),s(sET),11); k.s_add_u32(s(34),s(34),s(35)); k.s_add_u32(s(35),s(34),16*20480)
            for b in range(2):
                for u in range(2): k.buffer_store_dwordx4(xreg(0,u,b),v(1),s(SXA,4),s(34+u),mods=f"offen offset:{b*1024}" if b else "offen")
        for b in range(2):
            z=(i==0 and b==0)
            for u in range(2):
                x=xreg(i,u,b)
                for cf in range(4): k.mfma(cacc(u,cf),x,rreg(i,b,cf),"0" if z else cacc(u,cf))
                k.mfma(v(64+4*u,4),x,x,"0" if z else v(64+4*u,4))
                k.mfma(v(72+4*u,4),x,v(20,4),"0" if z else v(72+4*u,4))
    stamp(k)
    k.v_and_b32(v(24),48,v(0)); k.v_lshl_add_u32(v(24),v(3),2,v(24)); k.v_lshlrev_b32(v(24),2,v(24))
    for u in range(2):
        for r in range(4): t=k.ds_bpermute_b32(v(64+4*u+r),v(24),v(64+4*u+r),mods=f"offset:{4*r}")
    k.s_mov_b32(s(34),f32(1/640)); k.v_mov_b32(v(25),f32(1e-5))
    for x in range(8): k.v_mul_f32(v(72+x),s(34),v(72+x))
    k.wait(lg=t)
    for x in range(8): k.v_fma_f32(v(64+x),v(64+x),s(34),v(25))
    for x in range(8): k.v_fma_f32(v(64+x),"-"+v(72+x),v(72+x),v(64+x))
    for x in range(8): k.v_max_f32(v(64+x),v(25),v(64+x))
    for x in range(8): k.v_rsq_f32(v(64+x),v(64+x))
    CX=XST
    CX=XST+65536 if first else XST
    k.s_lshl_b32(s(34),s(sW),12); k.s_add_u32(s(34),s(34),CX); k.v_add_u32(v(26),s(34),v(1)); k.v_add_u32(v(27),CX,v(1))
    for cf in range(4):
        for u in range(2):
            for r in range(4): k.v_mul_f32(v(32+(u*4+cf)*4+r),v(64+4*u+r),v(32+(u*4+cf)*4+r))
        for u in range(2):
            for h in range(2): k.v_cvt_pk_bf16_f32(v(80+cf*4+u*2+h),v(32+(u*4+cf)*4+2*h),v(32+(u*4+cf)*4+2*h+1))
        t=k.ds_write_b128(v(26),v(80+cf*4,4),mods=f"offset:{cf*1024}")
    stamp(k)
    k.wait(lg=t); k.s_barrier()
    stamp(k)
    ct={}
    for wp in range(4):
        for cf in range(4): ct[wp]=k.ds_read_b128(v(96+(wp*4+cf)*4,4),v(27),mods=f"offset:{wp*4096+cf*1024}")
    k.s_lshl_b32(s(34),s(sW),5); k.v_add_u32(v(28),s(34),v(2)); k.v_mul_u32_u24(v(28),20480,v(28)); k.v_lshl_add_u32(v(28),v(3),4,v(28))
    k.s_mul_i32(s(34),s(sS2),1280); k.s_lshl_b32(s(35),s(sET),7); k.s_add_u32(s(34),s(34),s(35)); k.s_add_u32(s(35),s(34),16*20480)
    def o(kind,ef,tf): return v(32+kind*16+(ef*2+tf)*4,4)
    for wp in range(4):
        k.wait(lg=ct[wp])
        for ef in range(2):
            A=v(96+(wp*4+ef)*4,4); B=v(96+(wp*4+2+ef)*4,4)
            for tf in range(2):
                Tr=a((tf*4+wp)*4,4); Sn=a(32+(tf*4+wp)*4,4)
                k.mfma(o(0,ef,tf),A,Tr,o(0,ef,tf) if wp else "0")
                k.mfma(o(1,ef,tf),B,Tr,o(1,ef,tf) if wp else "0")
                k.mfma(o(2,ef,tf),A,Sn,o(2,ef,tf) if wp else "0")
            for tf in range(2):
                Sn=a(32+(tf*4+wp)*4,4)
                k.mfma(o(0,ef,tf),B,Sn,o(0,ef,tf))
    for ef in range(2):
        for tf in range(2):
            x=(ef*2+tf)*4
            for r in range(4): k.v_sub_f32(v(48+x+r),v(48+x+r),v(64+x+r))
            for r in range(4): k.v_cvt_pk_bf16_f32(v(80+x+r),v(32+x+r),v(48+x+r))
            k.buffer_store_dwordx4(v(80+x,4),v(28),s(SV,4),s(34+tf),mods=f"offen offset:{ef*64}" if ef else "offen")
    stamp(k)
    stamp_out(k,0 if first else 3,sW,reset=2)
    k.s_endpgm()
    if first:
        k.label(PREP)
        k.s_waitcnt(mods="lgkmcnt(0)")
        sP=32
        k.s_sub_u32(s(sP),s(2),160)
        k.v_and_b32(v(6),3,v(0))
        k.v_bfe_u32(v(7),v(0),2,2)
        k.s_cmp_ge_u32(s(sP),27); k.s_cbranch_scc1(PREP2)
        SI,SO,SC=8,12,16
        srd(k,SI,28,0,D*F*2); srd(k,SO,4,WS_W1P,WPSZ); srd(k,SC,4,WS_CS1,CSSZ)
        k.v_mul_u32_u24(v(8),F*2,v(4)); k.v_lshl_add_u32(v(8),v(5),4,v(8))
        k.s_mul_i32(s(34),s(sW),160*F*2); k.s_lshl_b32(s(35),s(sP),7); k.s_add_u32(s(34),s(34),s(35))
        k.s_mul_i32(s(36),s(sW),20480)
        for i in range(20):
            k.s_add_u32("m0",s(36),i*1024)
            t=k.buffer_load_dwordx4(v(8),s(SI,4),s(34),mods="offen lds")
            k.s_add_u32(s(34),s(34),8*F*2)
        k.v_lshl_add_u32(v(9),v(3),4,v(7)); k.v_lshlrev_b32(v(9),7,v(9)); k.v_lshl_add_u32(v(9),v(6),4,v(9))
        k.s_lshr_b32(s(34),s(sW),1); k.s_and_b32(s(35),s(sW),1)
        k.s_lshl_b32(s(36),s(34),6); k.s_lshl_b32(s(37),s(35),3); k.s_add_u32(s(36),s(36),s(37)); k.v_add_u32(v(9),s(36),v(9))
        k.v_add_u32(v(10),40960,v(9))
        k.s_lshl_b32(s(36),s(sP),1); k.s_add_u32(s(36),s(36),s(34))
        k.s_mul_i32(s(38),s(36),40960); k.s_lshl_b32(s(37),s(35),10); k.s_add_u32(s(38),s(38),s(37))
        for j in range(4): k.v_mov_b32(v(20+j),"0x3f803f80")
        stamp(k)
        k.wait(vm=t); k.s_barrier()
        stamp(k)
        tk={}
        def rd(ks):
            for hj in range(2):
                off=(64*(ks>>1)+8*(ks&1)+4*hj)*128
                tk[ks]=k.ds_read_b64_tr_b16(v(32+ks*4+2*hj,2),v(9) if ks<10 else v(10),mods=f"offset:{off if ks<10 else off-40960}")
        for ks in range(6): rd(ks)
        for ks in range(20):
            k.wait(lg=tk[ks])
            if ks+6<20: rd(ks+6)
            k.buffer_store_dwordx4(v(32+ks*4,4),v(1),s(SO,4),s(38),mods="offen offset:2048" if ks&1 else "offen")
            if ks&1: k.s_add_u32(s(38),s(38),4096)
            k.mfma(v(24,4),v(32+ks*4,4),v(20,4),v(24,4) if ks else "0")
        k.v_lshlrev_b32(v(11),5,v(3)); k.v_lshl_add_u32(v(11),v(2),28,v(11))
        k.s_lshl_b32(s(36),s(36),7); k.s_lshl_b32(s(37),s(35),4); k.s_add_u32(s(36),s(36),s(37))
        k.buffer_store_dwordx4(v(24,4),v(11),s(SC,4),s(36),mods="offen")
        stamp_out(k,0,sW,reset=2)
        k.s_endpgm()
        k.label(PREP2)
        k.s_sub_u32(s(sP),s(sP),27)
        srd(k,SI,30,0,D*F*2); srd(k,SO,4,WS_W2P,WPSZ)
        k.s_mul_i32(s(34),s(sP),81920); k.s_mul_i32(s(36),s(sW),20480); k.s_add_u32(s(34),s(34),s(36))
        for i in range(5):
            k.s_add_u32("m0",s(36),i*4096)
            for j in range(4): t=k.buffer_load_dwordx4(v(1),s(SI,4),s(34),mods=f"offen offset:{j*1024} lds" if j else "offen lds")
            k.s_add_u32(s(34),s(34),4096)
        k.s_and_b32(s(34),s(sW),1); k.s_lshr_b32(s(35),s(sW),1)
        k.v_lshl_add_u32(v(9),v(3),3,v(7)); k.v_mul_u32_u24(v(9),1280,v(9))
        k.s_mul_i32(s(36),s(34),32*1280); k.s_mul_i32(s(37),s(35),640); k.s_add_u32(s(36),s(36),s(37)); k.v_add_u32(v(9),s(36),v(9))
        k.v_lshrrev_b32(v(11),1,v(6)); k.v_lshl_add_u32(v(10),v(11),5,v(9)); k.v_and_b32(v(11),1,v(6)); k.v_lshl_add_u32(v(10),v(11),3,v(10))
        k.v_lshl_add_u32(v(9),v(6),5,v(9))
        k.s_lshl_b32(s(36),s(sP),1); k.s_add_u32(s(36),s(36),s(34)); k.s_mul_i32(s(38),s(36),5120)
        k.s_mul_i32(s(37),s(35),4*54*5120); k.s_add_u32(s(38),s(38),s(37))
        k.v_add_u32(v(12),4096,v(1))
        stamp(k)
        k.wait(vm=t); k.s_barrier()
        stamp(k)
        from emu import ct_params
        tk={}
        def rd2(z):
            x,mf=divmod(z,5); ksA,ksS,half=ct_params(x)
            for hj in range(2):
                if mf<4:
                    ks=ksA+(mf>>1); col=64*(ks>>1)+8*(ks&1)+4*(mf&1); ad=v(9)
                else:
                    col=64*(ksS>>1)+8*(ksS&1)+32*half; ad=v(10)
                tk[z]=k.ds_read_b64_tr_b16(v(32+z*4+2*hj,2),ad,mods=f"offset:{4*hj*1280+col*2}")
        for z in range(6): rd2(z)
        for z in range(20):
            k.wait(lg=tk[z])
            if z+6<20: rd2(z+6)
            mf=z%5
            k.buffer_store_dwordx4(v(32+z*4,4),v(1) if mf<4 else v(12),s(SO,4),s(38),mods=f"offen offset:{mf*1024}" if 0<mf<4 else "offen")
            if mf==4: k.s_add_u32(s(38),s(38),54*5120)
        stamp_out(k,0,sW)
    k.label(END); k.s_endpgm()
    k.finalize()
    return k,dict(grid=NW,block=256,lds=(XST+65536+16384) if first else XST+16384,accum=256 if not first else 160)

def build(path,order=None):
    ks={}
    ks["k1a_kernel"]=gen_k1("k1a_kernel",True)
    ks["k2_kernel"]=gen_k2("k2_kernel")
    ks["k3a_kernel"]=gen_k3("k3a_kernel",False)
    ks["k1b_kernel"]=gen_k1("k1b_kernel",False)
    ks["k3b_kernel"]=gen_k3("k3b_kernel",True)
    order=order or ["k1a_kernel","k2_kernel","k3a_kernel","k1b_kernel","k2_kernel","k3b_kernel"]
    hdr=open("cdna_kernels/"+NAME+".s.ref").read().split("\n")
    out=[l for l in hdr[:12]]
    for n in order:
        p=ks[n][1]; out.append(f"; @launch kernel={n} grid=({p['grid']},1,1) block=({p['block']},1,1) lds={p['lds']}")
    out.append('.amdgcn_target "amdgcn-amd-amdhsa--gfx950"'); out.append(".text")
    for n,(k,p) in ks.items():
        out+= [f".globl {n}",".p2align 8",f".type {n},@function",f"{n}:",k.text()]
    out.append('.section .rodata,"a"')
    for n,(k,p) in ks.items():
        mv=k.maxreg("v"); ma=k.maxreg("a"); acc=p["accum"]
        assert mv<acc,(n,mv,acc)
        nv=acc+ma+1 if ma>=0 else mv+1
        print(n,"maxv",mv,"maxa",ma,"nfv",nv,"ninstr",sum(isinstance(x,Ins) for x in k.L),file=sys.stderr)
        out+=[".p2align 6",descriptor(n,nv,acc,max(k.maxreg("s")+1,16))]
    open(path,"w").write("\n".join(out)+"\n")
if __name__=="__main__":
    build(sys.argv[1] if len(sys.argv)>1 else "cdna_kernels/"+NAME+".s")
```
